```python
import torch

def _softmax(x, axis=-1):
    return torch.softmax(x, dim=axis)
def _gelu(x):
    return torch.nn.functional.gelu(x, approximate="tanh")
def _silu(x):
    return torch.nn.functional.silu(x)
def _sigmoid(x):
    return torch.sigmoid(x)
def _layernorm(x, axis=-1, eps=1e-5):
    m = x.mean(dim=axis, keepdim=True)
    v = x.var(dim=axis, keepdim=True, unbiased=False)
    return (x - m) / torch.sqrt(v + eps)
def _scatter_add(tgt, idx, src, axis=0):
    return tgt.clone().index_add_(axis, idx, src)
def _segment_sum(src, seg, n):
    out = torch.zeros((n,) + src.shape[1:], dtype=src.dtype)
    return out.index_add_(0, seg, src)
def _pad(x, pw):
    flat = tuple(v for pair in reversed(pw) for v in pair)
    return torch.nn.functional.pad(x, flat)

kernel_name = 'standalone__mpnn_edge_mlp__graph'

def setup_inputs():

    _w = (lambda a: (lambda t: t.to(torch.bfloat16) if t.is_floating_point() else t)(torch.as_tensor(a)))
    N, deg, D, De = 10000, 16, 128, max(16, 1)
    E = N * deg
    return {
        "x": _w((lambda *s: torch.randn(*s, dtype=torch.bfloat16) * 0.05)(N, D)),
        "e_attr": _w((lambda *s: torch.randn(*s, dtype=torch.bfloat16) * 0.4)(E, De)),
        "src": _w((lambda lo, hi, *s: torch.randint(lo, hi, s))(0, N, E).to(torch.int64)),
        "dst": _w((lambda lo, hi, *s: torch.randint(lo, hi, s))(0, N, E).to(torch.int64)),
        "w_msg": _w((lambda *s: torch.randn(*s, dtype=torch.bfloat16) * 0.4)(2 * D + De, D)),
        "w_upd": _w((lambda *s: torch.randn(*s, dtype=torch.bfloat16) * 0.05)(2 * D, D)),
    }

def reference(x, e_attr, src, dst, w_msg, w_upd):
    N, D = x.shape
    m_in = torch.concatenate([x[src], x[dst], e_attr], axis=-1)
    msg = _silu(m_in @ w_msg)
    agg = _segment_sum(msg, dst, N)
    return _silu(torch.concatenate([x, agg], axis=-1) @ w_upd)
```

```python
class Asm:
    def __init__(self):
        self.lines = []
        self.vnext = 0
        self.snext = 0
        self.vmax = 0
        self.smax = 0
        self.lab = 0
    def __call__(self, s):
        for l in s.strip("\n").split("\n"):
            l = l.strip()
            if not l: continue
            if l.endswith(":") or l.startswith("."):
                self.lines.append(l)
            else:
                self.lines.append("    " + l)
    def c(self, s):
        self.lines.append("    ; " + s)
    def label(self, base="L"):
        self.lab += 1
        return f"{base}_{self.lab}"
    def valloc(self, n=1, align=1):
        r = (self.vnext + align - 1) // align * align
        self.vnext = r + n
        self.vmax = max(self.vmax, self.vnext)
        return r
    def salloc(self, n=1, align=1):
        r = (self.snext + align - 1) // align * align
        self.snext = r + n
        self.smax = max(self.smax, self.snext)
        return r
    def text(self):
        return "\n".join(self.lines) + "\n"

def v(r, n=1):
    return f"v{r}" if n == 1 else f"v[{r}:{r+n-1}]"
def s(r, n=1):
    return f"s{r}" if n == 1 else f"s[{r}:{r+n-1}]"
```

```python
import sys
from asmlib import *

STAMP = "--stamp" in sys.argv
out_path = [a for a in sys.argv[1:] if not a.startswith("--")][0]

N, E = 10000, 160000
NB, NPB, NS = 250, 40, 20
NP, EPP = 64, 2500
R = 4
CAP = 448
XT = 8704
SLOT = XT + 1024
RING_ST = R * SLOT
S_BASE = 2 * RING_ST
S_ROW = CAP * 2 + 16
S_ROWS = 52
L_BASE = S_BASE + S_ROWS * S_ROW
L_ST = (CAP + 32 * (R + 1)) * 8
CNT = L_BASE + 2 * L_ST
INIT_END = CNT + 16
AGG = 147456
XOWN = 147456
W1L, W2L, W3L = 0, 32768, 65536
IMG, HDR = 32768, 73728
WUL = S_BASE
LDS_BYTES = 163840
assert INIT_END <= AGG and WUL + 65536 <= XOWN
EP_OFF = 0x200000
ST_OFF = 0x300000
NLOG2E = 0xBFB8AA3B
NLN2 = 0xBF317218

a = Asm()
a.snext = 4
sP = a.salloc(18, 4)
pX, pE, pSRC, pDST, pWM, pWU, pOUT, pDBG, pWS = [sP + 2 * i for i in range(9)]
rX = a.salloc(4, 4); rXI = a.salloc(4, 4); rEI = a.salloc(4, 4); rSRC = a.salloc(4, 4); rDST = a.salloc(4, 4)
rWM = a.salloc(4, 4); rWU = a.salloc(4, 4); rOUT = a.salloc(4, 4); rWS = a.salloc(4, 4)
sW = a.salloc(); sCB = a.salloc(); sST = a.salloc(); sEP = a.salloc(); sTAG = a.salloc()
sT0 = a.salloc(); sT1 = a.salloc(); sT2 = a.salloc(); sT3 = a.salloc()
sC1 = a.salloc(2, 2)
sC2 = a.salloc(2, 2)
sM = a.salloc(2, 2); sM2 = a.salloc(2, 2); sPEND = a.salloc(2, 2); sL7 = a.salloc(2, 2)
sN = a.salloc(); sTAU = a.salloc(); sSLOT = a.salloc(); sDX = a.salloc(); sSTEP = a.salloc()
sMODE = a.salloc(); sBASE = a.salloc(); sSPIN = a.salloc(); sRB = a.salloc(); sREND = a.salloc(); sHAVE = a.salloc()
NSTAMP = 10
sSTAMP = a.salloc(2, 2) if STAMP else None
assert a.smax <= 102, a.smax

a.vnext = 1
vL = a.valloc()
vTID16 = a.valloc()
vOFF = a.valloc()
vX0 = a.valloc(); vX1 = a.valloc(); vEp = a.valloc(); vS = a.valloc(); vT = a.valloc(); vLx = a.valloc(); vLe = a.valloc()
vEB = a.valloc()
pI0 = a.valloc(2, 2); pI1 = a.valloc(2, 2); pIE = a.valloc(2, 2)
vSX = a.valloc(2, 2); vSD = a.valloc()
vONE = a.valloc(); vBF1 = a.valloc(); vSTAMP = a.valloc()
t = a.valloc(16, 4)
W1 = a.valloc(32, 4); W3 = a.valloc(4, 4); Q = a.valloc(8, 4); AG = a.valloc(16, 4); U = a.valloc(16, 4); WB = a.valloc(32, 4)
D = a.valloc(16, 4); TM = a.valloc(16, 4)
MSG = a.valloc(8, 4); XA = a.valloc(32, 4); EA = a.valloc(4, 4); TA = a.valloc(8, 4); SB = a.valloc(8, 4)
assert TM == D + 16
assert a.vmax <= 256, a.vmax

def stamp(k):
    if STAMP:
        a(f"s_memrealtime {s(sSTAMP,2)}")
        a("s_waitcnt lgkmcnt(0)")
        a(f"v_writelane_b32 {v(vSTAMP)}, {s(sSTAMP)}, {k}")

def srd(r, p, nrec, stride=0):
    a(f"s_mov_b32 {s(r)}, {s(p)}")
    if stride:
        a(f"s_or_b32 {s(r+1)}, {s(p+1)}, {stride<<16:#x}")
    else:
        a(f"s_mov_b32 {s(r+1)}, {s(p+1)}")
    a(f"s_mov_b32 {s(r+2)}, {nrec:#x}")
    a(f"s_mov_b32 {s(r+3)}, 0x20000")

def mfma(d, A, B, c):
    cs = "0" if c is None else v(c, 16)
    a(f"v_mfma_f32_32x32x16_bf16 {v(d,16)}, {v(A,4)}, {v(B,4)}, {cs}")

def dma_block(rs, n, ldsbase_s, soff_s):
    a(f"s_mov_b32 m0, {s(ldsbase_s)}")
    a("s_nop 0")
    for i in range(n):
        a(f"buffer_load_dwordx4 {v(vOFF)}, {s(rs,4)}, {s(soff_s)} offen offset:{i*1024} lds")

name = "standalone__mpnn_edge_mlp__graph_kernel"
hdr = open("standalone__mpnn_edge_mlp__graph.s.ref").read().split("; Override launch")[0]
a.lines.append(hdr.rstrip("\n"))
a.lines.append(f"; @launch grid=({NB},1,1) block=(512,1,1) lds={LDS_BYTES}")
a(f""".amdgcn_target "amdgcn-amd-amdhsa--gfx950"
.text
.globl {name}
.p2align 8
.type {name},@function
{name}:""")
a(f"""
s_cmp_ge_u32 s2, {NB}
s_cbranch_scc1 L_end
s_load_dwordx16 {s(sP,16)}, s[0:1], 0
s_load_dwordx2 {s(pWS,2)}, s[0:1], 64
""")
if STAMP: a(f"v_mov_b32 {v(vSTAMP)}, 0")
stamp(0)
a(f"""
v_and_b32 {v(vL)}, 63, v0
v_lshrrev_b32 {v(t)}, 6, v0
v_lshlrev_b32 {v(vTID16)}, 4, v0
v_readfirstlane_b32 {s(sW)}, {v(t)}
v_lshrrev_b32 {v(t+1)}, 4, {v(vL)}
v_and_b32 {v(t+2)}, 15, {v(vL)}
v_lshlrev_b32 {v(t+3)}, 2, {v(t+1)}
v_xor_b32 {v(t+2)}, {v(t+2)}, {v(t+3)}
v_lshlrev_b32 {v(t+2)}, 4, {v(t+2)}
v_lshl_add_u32 {v(vOFF)}, {v(t+1)}, 8, {v(t+2)}
s_and_b32 {s(sCB)}, {s(sW)}, 3
s_lshr_b32 {s(sST)}, {s(sW)}, 2
s_lshl_b32 {s(sT0)}, s2, 2
s_add_u32 {s(sT0)}, {s(sT0)}, {EP_OFF:#x}
s_waitcnt lgkmcnt(0)
s_load_dword {s(sEP)}, {s(pWS,2)}, {s(sT0)}
""")
srd(rDST, pDST, E * 4); srd(rSRC, pSRC, E * 4); srd(rWS, pWS, EP_OFF + 1024)
PD, PS, PE = XA, XA + 8, XA + 16
a(f"""
s_cmp_ge_u32 s2, {NP}
s_cbranch_scc1 L_noprod1
s_mul_i32 {s(sT0)}, s2, {EPP*4}
s_add_u32 {s(sT1)}, {s(sT0)}, 8192
v_lshlrev_b32 {v(t)}, 2, v0
v_lshrrev_b32 {v(t+1)}, 3, v0
v_lshlrev_b32 {v(t+1)}, 2, {v(t+1)}
s_mov_b32 {s(sT2)}, {EP_OFF:#x}
buffer_load_dwordx4 {v(PD,4)}, {v(vTID16)}, {s(rDST,4)}, {s(sT0)} offen
buffer_load_dword {v(PD+4)}, {v(t)}, {s(rDST,4)}, {s(sT1)} offen
buffer_load_dwordx4 {v(PS,4)}, {v(vTID16)}, {s(rSRC,4)}, {s(sT0)} offen
buffer_load_dword {v(PS+4)}, {v(t)}, {s(rSRC,4)}, {s(sT1)} offen
""")
for j in range(4):
    a(f"buffer_load_dword {v(PE+j)}, {v(t+1)}, {s(rWS,4)}, {s(sT2)} offen offset:{j*256}")
a("L_noprod1:")
srd(rWU, pWU, 65536); srd(rX, pX, N * 256); srd(rWM, pWM, 272 * 256)
a(f"s_lshl_b32 {s(sT0)}, {s(sW)}, 12")
dma_block(rWM, 4, sT0, sT0)
a(f"""
s_lshl_b32 {s(sT1)}, {s(sW)}, 10
s_add_u32 {s(sT1)}, {s(sT1)}, {W3L}
""")
dma_block(rWM, 1, sT1, sT1)
a(f"""
s_mul_i32 {s(sT2)}, s2, {NPB*256}
s_lshl_b32 {s(sT1)}, {s(sW)}, 11
s_add_u32 {s(sT2)}, {s(sT2)}, {s(sT1)}
s_cmp_ge_u32 {s(sW)}, 5
s_cselect_b32 {s(sT2)}, 0x400000, {s(sT2)}
s_add_u32 {s(sT1)}, {s(sT1)}, {XOWN}
""")
dma_block(rX, 2, sT1, sT2)
a(f"""
s_lshl_b32 {s(sT2)}, {s(sW)}, 13
s_add_u32 {s(sT1)}, {s(sT2)}, {WUL}
""")
dma_block(rWU, 4, sT1, sT2)
a(f"""
s_add_u32 {s(sT1)}, {s(sT1)}, 4096
s_add_u32 {s(sT2)}, {s(sT2)}, 4096
""")
dma_block(rWU, 4, sT1, sT2)
srd(rXI, pX, N, 256); srd(rEI, pE, E, 32); srd(rOUT, pOUT, N * 256)
a(f"""
s_mov_b32 {s(sL7)}, 0x80808080
s_mov_b32 {s(sL7+1)}, 0x80808080
s_mov_b32 {s(sC1)}, {NLOG2E:#x}
s_mov_b32 {s(sC1+1)}, {NLOG2E:#x}
s_mov_b32 {s(sC2)}, {NLN2:#x}
s_mov_b32 {s(sC2+1)}, {NLN2:#x}
v_mov_b32 {v(vONE)}, 1
v_mov_b32 {v(vBF1)}, 0x3f80
""")
HK = 0x9E3779B1
HX = 0x5BD1E995
a(f"""
s_cmp_ge_u32 s2, {NP}
s_cbranch_scc1 L_noprod2
v_mov_b32 {v(t)}, 0
v_mov_b32 {v(t+1)}, 0
v_mov_b32 {v(t+2)}, 0
v_mov_b32 {v(t+3)}, 0
v_lshlrev_b32 {v(t+4)}, 2, v0
v_add_u32 {v(t+4)}, {HDR}, {v(t+4)}
""")
for j in range(4):
    a(f"ds_write_b128 {v(vTID16)}, {v(t,4)} offset:{IMG + j*8192}")
a(f"""
ds_write_b32 {v(t+4)}, {v(t)}
s_mov_b32 {s(sT0)}, 52429
v_lshlrev_b32 {v(t+5)}, 8, v0
v_lshlrev_b32 {v(t+6)}, 6, v0
v_add_u32 {v(t+6)}, {2048*64}, {v(t+6)}
v_cmp_gt_u32 {s(sM,2)}, {EPP-2048}, v0
s_waitcnt lgkmcnt(0)
s_barrier
s_waitcnt vmcnt(19)
""".replace(f"v_cmp_gt_u32 {s(sM,2)}, {EPP-2048}, v0", f"v_cmp_gt_u32 vcc, {EPP-2048}, v0\ns_mov_b64 {s(sM,2)}, vcc"))
stamp(1)
PB, PR, PO = D, D + 6, D + 16
assert PR % 2 == 0 and PO % 2 == 0
for j in range(5):
    a(f"""
v_mul_u32_u24 {v(PB+j)}, {s(sT0)}, {v(PD+j)}
v_lshrrev_b32 {v(PB+j)}, 21, {v(PB+j)}
v_mul_u32_u24 {v(t+7)}, {NPB}, {v(PB+j)}
v_sub_u32 {v(t+7)}, {v(PD+j)}, {v(t+7)}
v_lshlrev_b32 {v(t+8)}, 18, {v(PS+j)}
""")
    if j < 4:
        a(f"v_add3_u32 {v(t+7)}, {v(t+7)}, {v(t+5)}, {v(t+8)}")
        a(f"v_add_u32 {v(PR+2*j+1)}, {1 + 64*j}, {v(t+7)}")
    else:
        a(f"v_add3_u32 {v(t+7)}, {v(t+7)}, {v(t+6)}, {v(t+8)}")
        a(f"v_add_u32 {v(PR+2*j+1)}, 1, {v(t+7)}")
        a(f"s_mov_b64 exec, {s(sM,2)}")
    a(f"""
v_mov_b32 {v(PR+2*j)}, 1
v_lshlrev_b32 {v(t+9+j)}, 3, {v(PB+j)}
v_add_u32 {v(t+9+j)}, {HDR}, {v(t+9+j)}
ds_add_rtn_u64 {v(PO+2*j,2)}, {v(t+9+j)}, {v(PR+2*j,2)}
""")
a("s_mov_b64 exec, -1")
for j in range(5):
    lab = a.label("L_ovf"); lab2 = a.label("L_ovfr")
    if j == 4:
        a(f"s_mov_b64 exec, {s(sM,2)}")
    a(f"""
s_waitcnt lgkmcnt({4-j if j<4 else 0})
""" if j == 0 else "")
    if j == 1:
        a("s_waitcnt lgkmcnt(0)")
    sl = PO + 2 * j
    a(f"""
v_cmp_lt_u32 vcc, 22, {v(sl)}
v_lshlrev_b32 {v(PB+j)}, 7, {v(PB+j)}
s_nop 0
v_addc_co_u32 {v(t+7)}, vcc, 0, {v(sl)}, vcc
v_and_b32 {v(t+8)}, 7, {v(t+7)}
v_lshl_add_u32 {v(PB+j)}, {v(t+8)}, 4, {v(PB+j)}
v_lshrrev_b32 {v(t+7)}, 3, {v(t+7)}
v_lshl_add_u32 {v(PB+j)}, {v(t+7)}, 2, {v(PB+j)}
v_cmp_gt_u32 vcc, 30, {v(sl)}
s_and_saveexec_b64 {s(sM2,2)}, vcc
ds_write_b32 {v(PB+j)}, {v(PR+2*j+1)} offset:{IMG}
s_andn2_b64 exec, {s(sM2,2)}, exec
s_cbranch_execz {lab2}
ds_sub_u32 {v(t+9+j)}, {v(PR+2*j+1)} offset:4
{lab2}:
s_mov_b64 exec, -1
""")
a(f"""
v_lshrrev_b32 {v(t+4)}, 3, v0
v_lshlrev_b32 {v(t+5)}, 13, {v(t+4)}
v_lshlrev_b32 {v(t+4)}, 3, {v(t+4)}
v_add_u32 {v(t+4)}, {HDR}, {v(t+4)}
v_and_b32 {v(t+6)}, 7, v0
v_lshl_add_u32 {v(t+5)}, {v(t+6)}, 4, {v(t+5)}
s_lshl_b32 {s(sT0)}, s2, 7
s_mov_b32 {s(sT1)}, {HK:#x}
s_waitcnt lgkmcnt(0)
s_barrier
""")
G, H = D, D + 16
for j in range(4):
    a(f"ds_read_b128 {v(G+4*j,4)}, {v(vTID16)} offset:{IMG + j*8192}")
    a(f"ds_read_b64 {v(H+2*j,2)}, {v(t+4)} offset:{j*512}")
a("s_waitcnt vmcnt(15)")
for j in range(4):
    a(f"v_mul_lo_u32 {v(PE+j)}, {v(PE+j)}, {s(sT1)}")
    a(f"v_xor_b32 {v(PE+j)}, {HX:#x}, {v(PE+j)}")
a(f"s_mov_b32 {s(rWS+2)}, {NB*8192:#x}")
for j in range(4):
    a(f"""
s_waitcnt lgkmcnt({6-2*j})
v_add3_u32 {v(H+2*j+1)}, {v(H+2*j+1)}, {v(H+2*j)}, {v(PE+j)}
v_cndmask_b32 {v(G+4*j+2)}, {v(G+4*j+2)}, {v(H+2*j)}, {s(sL7,2)}
v_cndmask_b32 {v(G+4*j+3)}, {v(G+4*j+3)}, {v(H+2*j+1)}, {s(sL7,2)}
buffer_store_dwordx4 {v(G+4*j,4)}, {v(t+5)}, {s(rWS,4)}, {s(sT0)} offen sc0 sc1
s_add_u32 {s(sT0)}, {s(sT0)}, {64*8192}
""")
a(f"s_mov_b32 {s(rWS+2)}, {EP_OFF+1024:#x}")
stamp(2)
a("""
s_barrier
L_noprod2:
""")
a(f"""
s_lshl_b32 {s(sT0)}, {s(sW)}, 12
s_add_u32 {s(sT0)}, {s(sT0)}, {W2L}
""")
dma_block(rWM, 4, sT0, sT0)
a(f"""
s_lshr_b32 {s(sT0)}, s2, 3
s_mul_i32 {s(sT0)}, {s(sT0)}, {646*128}
v_lshlrev_b32 {v(t)}, 7, v0
s_add_u32 {s(sT1)}, {s(sT0)}, 65536
s_cmp_ge_u32 {s(sW)}, 3
s_cselect_b32 {s(sT1)}, 0x400000, {s(sT1)}
buffer_load_dword {v(vSX)}, {v(t)}, {s(rX,4)}, {s(sT0)} offen
buffer_load_dword {v(vSX+1)}, {v(t)}, {s(rX,4)}, {s(sT1)} offen
""")
vq, vr, vc4, vh, vm = t, t + 1, t + 2, t + 3, t + 4
a(f"""
v_lshrrev_b32 {v(vq)}, 4, {v(vL)}
v_bfe_u32 {v(vr)}, {v(vL)}, 2, 2
v_and_b32 {v(vc4)}, 3, {v(vL)}
v_lshrrev_b32 {v(vh)}, 5, {v(vL)}
v_and_b32 {v(vm)}, 31, {v(vL)}
""")
aW, aWt, aWb, aXo = t + 5, t + 6, t + 7, t + 8
x1, x2, x3 = t + 9, t + 10, t + 11
a(f"""
v_xor_b32 {v(x1)}, {s(sCB)}, {v(vr)}
v_lshlrev_b32 {v(x1)}, 6, {v(x1)}
v_lshl_add_u32 {v(x1)}, {v(vr)}, 8, {v(x1)}
v_and_b32 {v(x2)}, 1, {v(vq)}
""")
a(f"""
v_lshl_add_u32 {v(aW)}, {v(vh)}, 11, {v(x1)}
v_lshl_add_u32 {v(aW)}, {v(x2)}, 5, {v(aW)}
v_lshl_add_u32 {v(aW)}, {v(vc4)}, 3, {v(aW)}
""")
a(f"""
v_and_b32 {v(x3)}, 1, {v(vc4)}
v_lshl_add_u32 {v(x1)}, {v(x3)}, 5, {v(x1)}
v_lshl_add_u32 {v(x1)}, {v(x2)}, 4, {v(x1)}
v_lshrrev_b32 {v(x3)}, 1, {v(vc4)}
v_lshl_add_u32 {v(x1)}, {v(x3)}, 3, {v(x1)}
v_add_u32 {v(x1)}, {WUL}, {v(x1)}
v_lshl_add_u32 {v(aWt)}, {v(vh)}, 11, {v(x1)}
v_lshl_add_u32 {v(aWb)}, {v(vh)}, 10, {v(x1)}
""")
a(f"""
s_mul_i32 {s(sT0)}, {s(sST)}, {NS}
v_add_u32 {v(x1)}, {s(sT0)}, {v(vm)}
v_cmp_gt_u32 vcc, {NS}, {v(vm)}
v_mov_b32 {v(x2)}, {NPB}
s_nop 0
v_cndmask_b32 {v(x2)}, {v(x2)}, {v(x1)}, vcc
v_and_b32 {v(x3)}, 3, {v(x2)}
v_lshlrev_b32 {v(x3)}, 2, {v(x3)}
v_xor_b32 {v(x3)}, {v(x3)}, {v(vh)}
v_lshlrev_b32 {v(x3)}, 4, {v(x3)}
v_lshl_add_u32 {v(aXo)}, {v(x2)}, 8, {v(x3)}
v_add_u32 {v(aXo)}, {XOWN}, {v(aXo)}
""")
a(f"""
s_mov_b32 {s(sT1)}, {S_ROW}
v_mul_lo_u32 {v(vS)}, {v(x1)}, {s(sT1)}
v_lshl_add_u32 {v(vS)}, {v(vh)}, 4, {v(vS)}
v_add_u32 {v(vS)}, {S_BASE}, {v(vS)}
""")
a(f"""
v_lshl_add_u32 {v(x1)}, {v(vh)}, 2, {v(vr)}
v_add_u32 {v(x1)}, {s(sT0)}, {v(x1)}
v_mul_lo_u32 {v(vT)}, {v(x1)}, {s(sT1)}
v_and_b32 {v(x2)}, 1, {v(vq)}
v_lshl_add_u32 {v(vT)}, {v(x2)}, 5, {v(vT)}
v_and_b32 {v(x2)}, 1, {v(vc4)}
v_lshl_add_u32 {v(vT)}, {v(x2)}, 4, {v(vT)}
v_lshrrev_b32 {v(x2)}, 1, {v(vc4)}
v_lshl_add_u32 {v(vT)}, {v(x2)}, 3, {v(vT)}
v_add_u32 {v(vT)}, {S_BASE}, {v(vT)}
""")
a(f"""
s_mul_i32 {s(sRB)}, {s(sST)}, {RING_ST}
s_add_u32 {s(sREND)}, {s(sRB)}, {RING_ST}
v_lshrrev_b32 {v(x1)}, 2, {v(vm)}
v_lshlrev_b32 {v(x1)}, 6, {v(x1)}
v_lshl_add_u32 {v(x1)}, {v(vm)}, 8, {v(x1)}
v_and_b32 {v(x2)}, 3, {v(vm)}
v_xor_b32 {v(x2)}, {v(x2)}, {v(vh)}
v_lshl_add_u32 {v(vX0)}, {v(x2)}, 4, {v(x1)}
v_add_u32 {v(vX0)}, {s(sRB)}, {v(vX0)}
v_xor_b32 {v(vX1)}, 32, {v(vX0)}
v_bfe_u32 {v(x1)}, {v(vm)}, 3, 1
v_xor_b32 {v(x1)}, {v(x1)}, {v(vh)}
v_lshlrev_b32 {v(x1)}, 4, {v(x1)}
v_lshl_add_u32 {v(vEp)}, {v(vm)}, 5, {v(x1)}
v_add_u32 {v(vEp)}, {s(sRB)}, {v(vEp)}
""")
a(f"""
s_mul_i32 {s(sT0)}, {s(sST)}, {L_ST}
s_lshr_b32 {s(sT1)}, {s(sCB)}, 1
s_lshl_b32 {s(sT1)}, {s(sT1)}, 7
s_add_u32 {s(sT0)}, {s(sT0)}, {s(sT1)}
s_and_b32 {s(sT2)}, {s(sCB)}, 1
s_lshl_b32 {s(sT1)}, {s(sT2)}, 5
s_add_u32 {s(sT0)}, {s(sT0)}, {s(sT1)}
s_add_u32 {s(sT0)}, {s(sT0)}, {L_BASE}
v_lshlrev_b32 {v(vLx)}, 3, {v(vq)}
v_add_u32 {v(vLx)}, {s(sT0)}, {v(vLx)}
v_bfe_u32 {v(x1)}, {v(vL)}, 3, 2
v_lshlrev_b32 {v(x1)}, 3, {v(x1)}
v_lshl_add_u32 {v(x1)}, {v(vh)}, 6, {v(x1)}
v_add_u32 {v(vLe)}, {s(sT0)}, {v(x1)}
v_and_b32 {v(x1)}, 15, {v(vL)}
v_xor_b32 {v(x1)}, {v(x1)}, {v(vq)}
v_lshlrev_b32 {v(pI0+1)}, 4, {v(x1)}
v_mov_b32 {v(pI1+1)}, {v(pI0+1)}
s_lshl_b32 {s(sT2)}, {s(sT2)}, 2
v_and_b32 {v(x1)}, 7, {v(vL)}
v_xor_b32 {v(x1)}, {s(sT2)}, {v(x1)}
v_lshlrev_b32 {v(pIE+1)}, 2, {v(x1)}
s_mul_i32 {s(sDX)}, {s(sCB)}, {2*1088}
v_lshrrev_b32 {v(x1)}, 3, v0
v_mul_u32_u24 {v(vEB)}, {EPP}, {v(x1)}
""")
a(f"""
s_cmp_ge_u32 s2, {NP}
s_cbranch_scc1 L_w1
s_waitcnt vmcnt(10)
s_branch L_w2
L_w1:
s_waitcnt vmcnt(6)
L_w2:
s_barrier
""")
stamp(3)
for ks in range(8):
    a(f"v_xor_b32 {v(x1)}, {ks*32}, {v(aXo)}")
    a(f"ds_read_b128 {v(XA+4*ks,4)}, {v(x1)}")
for ks in range(8):
    for h2 in range(2):
        a(f"ds_read_b64_tr_b16 {v(D+4*ks+2*h2,2)}, {v(aWt)} offset:{ks*4096 + h2*1024}")
for ks in range(8):
    for h2 in range(2):
        a(f"ds_read_b64_tr_b16 {v(WB+4*ks+2*h2,2)}, {v(aWb)} offset:{32768 + ks*4096 + h2*2048}")
a("s_waitcnt lgkmcnt(15)")
a("s_waitcnt lgkmcnt(0)")
for ks in range(8):
    mfma(U, D + 4 * ks, XA + 4 * ks, None if ks == 0 else U)
for ks in range(8):
    for h2 in range(2):
        a(f"ds_read_b64_tr_b16 {v(W1+4*ks+2*h2,2)}, {v(aW)} offset:{W1L + ks*4096 + h2*1024}")
a(f"v_add_u32 {v(x1)}, {W3L}, {v(aW)}")
for h2 in range(2):
    a(f"ds_read_b64_tr_b16 {v(W3+2*h2,2)}, {v(x1)} offset:{h2*1024}")
a("""
s_waitcnt vmcnt(2)
s_barrier
""")
stamp(4)
for ks in range(8):
    for h2 in range(2):
        a(f"ds_read_b64_tr_b16 {v(D+4*ks+2*h2,2)}, {v(aW)} offset:{W2L + ks*4096 + h2*1024}")

def init_lists():
    z, o, ad = t + 4, t + 8, t + 12
    for i in range(4):
        a(f"v_mov_b32 {v(z+i)}, 0")
        a(f"v_mov_b32 {v(o+i)}, 0x100000")
    a(f"v_add_u32 {v(ad)}, {S_BASE}, {v(vTID16)}")
    sbytes = S_ROWS * S_ROW
    full = sbytes // 8192
    for j in range(full):
        a(f"ds_write_b128 {v(ad)}, {v(z,4)} offset:{j*8192}")
    rem = sbytes - full * 8192
    assert rem % 16 == 0
    a(f"v_cmp_gt_u32 vcc, {rem//16}, v0")
    a(f"s_and_saveexec_b64 {s(sM,2)}, vcc")
    a(f"ds_write_b128 {v(ad)}, {v(z,4)} offset:{full*8192}")
    a(f"s_mov_b64 exec, -1")
    lbytes = 2 * L_ST
    assert 8192 < lbytes <= 16384 and lbytes % 16 == 0
    a(f"ds_write_b128 {v(ad)}, {v(o,4)} offset:{L_BASE - S_BASE}")
    a(f"v_cmp_gt_u32 vcc, {(lbytes-8192)//16}, v0")
    a(f"s_and_saveexec_b64 {s(sM,2)}, vcc")
    a(f"ds_write_b128 {v(ad)}, {v(o,4)} offset:{L_BASE - S_BASE + 8192}")
    a(f"s_mov_b64 exec, -1")
    a(f"v_cmp_eq_u32 vcc, 0, v0")
    a(f"s_and_saveexec_b64 {s(sM,2)}, vcc")
    a(f"ds_write_b128 {v(ad)}, {v(z,4)} offset:{CNT - S_BASE}")
    a(f"s_mov_b64 exec, -1")
init_lists()
a("s_waitcnt lgkmcnt(0)")
for ks in range(8):
    mfma(AG, XA + 4 * ks, D + 4 * ks, None if ks == 0 else AG)
for i in list(range(W1, W1 + 32)) + list(range(W3, W3 + 4)):
    tt = t + 2 * (i % 4)
    a(f"""
v_lshlrev_b32 {v(tt)}, 16, {v(i)}
v_and_b32 {v(tt+1)}, 0xffff0000, {v(i)}
v_mul_f32 {v(tt)}, {s(sC1)}, {v(tt)}
v_mul_f32 {v(tt+1)}, {s(sC1)}, {v(tt+1)}
v_cvt_pk_bf16_f32 {v(i)}, {v(tt)}, {v(tt+1)}
""")
for i in range(8):
    a(f"v_pk_mul_f32 {v(AG+2*i,2)}, {v(AG+2*i,2)}, {s(sC1,2)}")
for i in range(8):
    a(f"v_cvt_pk_bf16_f32 {v(Q+i)}, {v(AG+2*i)}, {v(AG+2*i+1)}")
for i in range(16):
    a(f"v_mov_b32 {v(AG+i)}, 0")
a(f"""
s_mul_i32 {s(sTAG)}, {s(sEP)}, {HK:#x}
s_xor_b32 {s(sTAG)}, {s(sTAG)}, {HX:#x}
s_add_u32 {s(sT0)}, {s(sTAG)}, 1
v_mov_b32 {v(t+4)}, 0
v_mov_b32 {v(t+5)}, {s(sT0)}
v_cndmask_b32 {v(t+5)}, {v(t+4)}, {v(t+5)}, {s(sL7,2)}
v_cndmask_b32 {v(t+4)}, 0, -1, {s(sL7,2)}
s_lshl_b32 {s(sT1)}, s2, 13
s_mov_b32 {s(sSPIN)}, 0
s_mov_b32 {s(sMODE)}, 0
s_barrier
""")
stamp(5)
C = t
a(f"""
L_poll:
buffer_load_dwordx4 {v(C,4)}, {v(vTID16)}, {s(rWS,4)}, {s(sT1)} offen sc0 sc1
s_waitcnt vmcnt(0)
v_xor_b32 {v(t+6)}, {v(C+3)}, {v(t+4)}
v_add3_u32 {v(t+7)}, {v(C)}, {v(C+1)}, {v(C+2)}
v_add3_u32 {v(t+6)}, {v(t+6)}, {v(t+7)}, {v(t+5)}
s_nop 1
v_add_u32_dpp {v(t+6)}, {v(t+6)}, {v(t+6)} quad_perm:[1,0,3,2] row_mask:0xf bank_mask:0xf
s_nop 1
v_add_u32_dpp {v(t+6)}, {v(t+6)}, {v(t+6)} quad_perm:[2,3,0,1] row_mask:0xf bank_mask:0xf
s_nop 1
v_add_u32_dpp {v(t+6)}, {v(t+6)}, {v(t+6)} row_half_mirror row_mask:0xf bank_mask:0xf
s_add_u32 {s(sSPIN)}, {s(sSPIN)}, 1
v_cmp_ne_u32 vcc, 0, {v(t+6)}
s_cbranch_vccz L_got
s_cmp_lt_u32 {s(sSPIN)}, 0x8000
s_cbranch_scc0 L_end
s_sleep 2
s_branch L_poll
L_got:
""")
stamp(6)
a(f"""
v_cmp_lt_u32 vcc, 30, {v(C+2)}
s_and_b64 vcc, vcc, {s(sL7,2)}
v_cndmask_b32 {v(C+2)}, {v(C+2)}, 0, {s(sL7,2)}
v_cndmask_b32 {v(C+3)}, {v(C+3)}, 0, {s(sL7,2)}
s_cbranch_vccz L_noflag
v_mov_b32 {v(t+6)}, {CNT+8}
ds_write_b32 {v(t+6)}, {v(vONE)}
L_noflag:
""")
def place_issue(dl1, pos, ca):
    a(f"""
v_cmp_lt_u32 vcc, {NS}, {v(dl1)}
v_mov_b32 {v(ca)}, {CNT}
s_nop 0
v_addc_co_u32 {v(pos)}, vcc, 0, 0, vcc
""".replace(f"v_addc_co_u32 {v(pos)}, vcc, 0, 0, vcc", f"v_cndmask_b32 {v(pos)}, 0, {v(vONE)}, vcc"))
    a(f"""
v_lshl_add_u32 {v(ca)}, {v(pos)}, 2, {v(ca)}
v_mul_u32_u24 {v(ca+1)}, {L_ST}, {v(pos)}
ds_add_rtn_u32 {v(pos)}, {v(ca)}, {v(vONE)}
""")
def place_finish(dl1, pos, ca, pair, okmask):
    a(f"""
v_cmp_gt_u32 vcc, {CAP}, {v(pos)}
s_and_b64 exec, exec, vcc
v_lshl_add_u32 {v(ca+1)}, {v(pos)}, 3, {v(ca+1)}
v_add_u32 {v(ca+1)}, {L_BASE}, {v(ca+1)}
v_mul_u32_u24 {v(ca)}, {S_ROW}, {v(dl1)}
v_lshl_add_u32 {v(ca)}, {v(pos)}, 1, {v(ca)}
v_add_u32 {v(ca)}, {S_BASE - S_ROW}, {v(ca)}
ds_write_b64 {v(ca+1)}, {v(pair,2)}
ds_write_b16 {v(ca)}, {v(vBF1)}
""")
for jj in range(2):
    skip = a.label("L_pl")
    if jj == 1:
        a(f"""
v_or_b32 {v(t+6)}, {v(C+2)}, {v(C+3)}
v_cmp_ne_u32 vcc, 0, {v(t+6)}
s_cbranch_vccz {skip}
""")
    regs = []
    for k in range(2):
        j = 2 * jj + k
        b = D + 8 * k
        dl1, pos, ca, pair = b, b + 1, b + 2, b + 4
        msk = [sM, sM2][k]
        regs.append((dl1, pos, ca, pair, msk))
        a(f"""
v_cmp_ne_u32 vcc, 0, {v(C+j)}
s_mov_b64 {s(msk,2)}, vcc
s_mov_b64 exec, vcc
v_and_b32 {v(dl1)}, 63, {v(C+j)}
""")
        place_issue(dl1, pos, ca)
        a(f"""
v_lshrrev_b32 {v(pair)}, 18, {v(C+j)}
v_bfe_u32 {v(pair+1)}, {v(C+j)}, 6, 12
v_add_u32 {v(pair+1)}, {v(pair+1)}, {v(vEB)}
s_mov_b64 exec, -1
""")
    a("s_waitcnt lgkmcnt(0)")
    for (dl1, pos, ca, pair, msk) in regs:
        a(f"s_mov_b64 exec, {s(msk,2)}")
        place_finish(dl1, pos, ca, pair, None)
    a("s_mov_b64 exec, -1")
    if jj == 1:
        a(f"{skip}:")
a(f"""
v_mov_b32 {v(t+6)}, {CNT}
s_waitcnt lgkmcnt(0)
s_barrier
ds_read_b128 {v(t,4)}, {v(t+6)}
""")
def list_reads(off):
    a(f"ds_read_b32 {v(pI0)}, {v(vLx)} offset:{off}")
    a(f"ds_read_b32 {v(pI1)}, {v(vLx)} offset:{off+64}")
    a(f"ds_read_b32 {v(pIE)}, {v(vLe)} offset:{off+4}")
a(f"""
s_waitcnt lgkmcnt(0)
v_readfirstlane_b32 {s(sT0)}, {v(t)}
v_readfirstlane_b32 {s(sT1)}, {v(t+1)}
v_readfirstlane_b32 {s(sT2)}, {v(t+2)}
s_max_u32 {s(sT3)}, {s(sT0)}, {s(sT1)}
s_cmp_gt_u32 {s(sT3)}, {CAP}
s_cbranch_scc1 L_slow
s_cmp_lg_u32 {s(sT2)}, 0
s_cbranch_scc1 L_slow
s_cmp_eq_u32 {s(sST)}, 0
s_cselect_b32 {s(sN)}, {s(sT0)}, {s(sT1)}
L_process:
s_add_u32 {s(sN)}, {s(sN)}, 31
s_lshr_b32 {s(sN)}, {s(sN)}, 5
s_cmp_eq_u32 {s(sN)}, 0
s_cbranch_scc1 L_loopdone
""")
stamp(7)
def dma_tile():
    a(f"""
s_add_u32 m0, {s(sSLOT)}, {s(sDX)}
s_lshl_b32 {s(sT0)}, {s(sCB)}, 8
buffer_load_dwordx4 {v(pI0,2)}, {s(rXI,4)}, 0 idxen offen lds
s_add_u32 m0, m0, 1088
s_add_u32 {s(sT0)}, {s(sT0)}, {s(sSLOT)}
buffer_load_dwordx4 {v(pI1,2)}, {s(rXI,4)}, 0 idxen offen lds
s_add_u32 m0, {s(sT0)}, {XT}
s_add_u32 {s(sSLOT)}, {s(sSLOT)}, {SLOT}
buffer_load_dword {v(pIE,2)}, {s(rEI,4)}, 0 idxen offen lds
s_cmp_eq_u32 {s(sSLOT)}, {s(sREND)}
s_cselect_b32 {s(sSLOT)}, {s(sRB)}, {s(sSLOT)}
""")
a(f"s_mov_b32 {s(sSLOT)}, {s(sRB)}")
for k in range(R):
    list_reads(k * 256)
    a("s_waitcnt lgkmcnt(0)")
    dma_tile()
def frag_reads():
    for ks in range(8):
        a(f"ds_read_b128 {v(XA+4*ks,4)}, {v([vX0,vX1][ks&1])} offset:{(ks>>1)*64}")
    a(f"ds_read_b128 {v(EA,4)}, {v(vEp)} offset:{XT}")
    for u in range(2):
        for h2 in range(2):
            a(f"ds_read_b64_tr_b16 {v(TA+4*u+2*h2,2)}, {v(vT)} offset:{(16*u+8*h2)*S_ROW}")
for i in range(8):
    a(f"v_mov_b32 {v(MSG+i)}, 0")
    a(f"v_mov_b32 {v(SB+i)}, 0")
a(f"""
s_mov_b32 {s(sTAU)}, 0
s_mov_b32 {s(sSTEP)}, 1
s_waitcnt vmcnt({3*(R-1)})
s_barrier
""")
frag_reads()
list_reads(R * 256)
stamp(8)
def sync():
    a(f"s_waitcnt vmcnt({3*(R-2)})")
    a("s_barrier")
    dma_tile()
a(f"""
.p2align 6
L_loop:
s_waitcnt lgkmcnt(0)
s_cmp_eq_u32 {s(sST)}, 0
s_cbranch_scc0 L_nosyncA
""")
sync()
a("L_nosyncA:")
mfma(AG, MSG, SB, AG)
mfma(AG, MSG + 4, SB + 4, AG)
mfma(D, EA, W3, None)
mfma(D, TA, Q, D)
mfma(D, TA + 4, Q + 4, D)
for ks in range(8):
    mfma(D, XA + 4 * ks, W1 + 4 * ks, D)
a(f"""
s_cmp_eq_u32 {s(sST)}, 0
s_cbranch_scc1 L_nosyncB
""")
sync()
a("L_nosyncB:")
a(f"""
s_cmp_eq_u32 {s(sSTEP)}, {R}
s_cselect_b32 {s(sT1)}, {-(R-1)*SLOT & 0xffffffff:#x}, {SLOT}
s_cselect_b32 {s(sSTEP)}, 0, {s(sSTEP)}
s_add_u32 {s(sSTEP)}, {s(sSTEP)}, 1
ds_read_b128 {v(SB,4)}, {v(vS)}
ds_read_b128 {v(SB+4,4)}, {v(vS)} offset:32
v_add_u32 {v(vX0)}, {s(sT1)}, {v(vX0)}
v_add_u32 {v(vX1)}, {s(sT1)}, {v(vX1)}
v_add_u32 {v(vEp)}, {s(sT1)}, {v(vEp)}
v_add_u32 {v(vT)}, 64, {v(vT)}
v_add_u32 {v(vS)}, 64, {v(vS)}
v_add_u32 {v(vLx)}, 0x100, {v(vLx)}
v_add_u32 {v(vLe)}, 0x100, {v(vLe)}
""".replace(f"s_cselect_b32 {s(sT1)}, {-(R-1)*SLOT & 0xffffffff:#x}, {SLOT}",
            f"s_mov_b32 {s(sT1)}, {SLOT}\ns_cselect_b32 {s(sT1)}, {-(R-1)*SLOT & 0xffffffff:#x}, {s(sT1)}"))
frag_reads()
list_reads(R * 256)
for i in range(16):
    a(f"v_exp_f32 {v(TM+i)}, {v(D+i)}")
for i in range(16):
    a(f"v_add_f32 {v(TM+i)}, 1.0, {v(TM+i)}")
for i in range(16):
    a(f"v_rcp_f32 {v(TM+i)}, {v(TM+i)}")
for i in range(8):
    a(f"v_pk_mul_f32 {v(TM+2*i,2)}, {v(TM+2*i,2)}, {v(D+2*i,2)}")
for i in range(8):
    a(f"v_cvt_pk_bf16_f32 {v(MSG+i)}, {v(TM+2*i)}, {v(TM+2*i+1)}")
a(f"""
s_add_u32 {s(sTAU)}, {s(sTAU)}, 1
s_cmp_lt_u32 {s(sTAU)}, {s(sN)}
s_cbranch_scc1 L_loop
s_waitcnt lgkmcnt(0)
""")
mfma(AG, MSG, SB, AG)
mfma(AG, MSG + 4, SB + 4, AG)
a(f"""
L_loopdone:
s_cmp_lg_u32 {s(sMODE)}, 0
s_cbranch_scc1 L_slow_next
L_epi:
""")
stamp(9)
a(f"""
s_lshl_b32 {s(sT0)}, {s(sST)}, 13
s_add_u32 {s(sT0)}, {s(sT0)}, {AGG}
v_lshlrev_b32 {v(t)}, 4, {v(vL)}
v_add_u32 {v(t)}, {s(sT0)}, {v(t)}
s_lshl_b32 {s(sT1)}, {s(sCB)}, 11
v_add_u32 {v(t+1)}, {s(sT1)}, {v(t)}
v_and_b32 {v(t+2)}, 31, {v(vL)}
v_lshrrev_b32 {v(t+3)}, 5, {v(vL)}
v_lshlrev_b32 {v(t+4)}, 8, {v(t+2)}
v_lshl_add_u32 {v(t+4)}, {v(t+3)}, 5, {v(t+4)}
v_cmp_gt_u32 vcc, {NS}, {v(t+2)}
v_mov_b32 {v(t+5)}, 0x400000
s_mul_i32 {s(sT2)}, s2, {NPB*256}
v_cndmask_b32 {v(t+4)}, {v(t+5)}, {v(t+4)}, vcc
s_mul_i32 {s(sT3)}, {s(sST)}, {NS*256}
s_add_u32 {s(sT2)}, {s(sT2)}, {s(sT3)}
s_lshl_b32 {s(sT3)}, {s(sCB)}, 6
s_add_u32 {s(sT2)}, {s(sT2)}, {s(sT3)}
""")
for i in range(8):
    a(f"v_pk_mul_f32 {v(AG+2*i,2)}, {v(AG+2*i,2)}, {s(sC2,2)}")
for i in range(8):
    a(f"v_cvt_pk_bf16_f32 {v(MSG+i)}, {v(AG+2*i)}, {v(AG+2*i+1)}")
a(f"""
ds_write_b128 {v(t+1)}, {v(MSG,4)}
ds_write_b128 {v(t+1)}, {v(MSG+4,4)} offset:1024
s_waitcnt vmcnt(0) lgkmcnt(0)
s_barrier
""")
for ks in range(8):
    a(f"ds_read_b128 {v(XA+4*ks,4)}, {v(t)} offset:{ks*1024}")
for ks in range(8):
    a(f"s_waitcnt lgkmcnt({7-ks})")
    mfma(U, WB + 4 * ks, XA + 4 * ks, U)
a(f"""
v_cmp_eq_u32 vcc, 0, v0
s_and_saveexec_b64 {s(sM,2)}, vcc
s_cbranch_execz L_noep
s_add_u32 {s(sEP)}, {s(sEP)}, 1
s_lshl_b32 {s(sT0)}, s2, 2
s_add_u32 {s(sT0)}, {s(sT0)}, {EP_OFF:#x}
v_mov_b32 {v(t+6)}, {s(sEP)}
v_mov_b32 {v(t+7)}, 0
buffer_store_dword {v(t+6)}, {v(t+7)}, {s(rWS,4)}, {s(sT0)} offen
L_noep:
s_mov_b64 exec, -1
s_nop 7
s_nop 3
""")
for i in range(8):
    a(f"v_pk_mul_f32 {v(TM+2*i,2)}, {v(U+2*i,2)}, {s(sC1,2)}")
for i in range(16):
    a(f"v_exp_f32 {v(TM+i)}, {v(TM+i)}")
for i in range(8):
    a(f"v_pk_add_f32 {v(TM+2*i,2)}, {v(TM+2*i,2)}, 1.0 op_sel_hi:[1,0]")
for i in range(16):
    a(f"v_rcp_f32 {v(TM+i)}, {v(TM+i)}")
for i in range(8):
    a(f"v_pk_mul_f32 {v(TM+2*i,2)}, {v(TM+2*i,2)}, {v(U+2*i,2)}")
for i in range(8):
    a(f"v_cvt_pk_bf16_f32 {v(MSG+i)}, {v(TM+2*i)}, {v(TM+2*i+1)}")
a(f"""
buffer_store_dwordx4 {v(MSG,4)}, {v(t+4)}, {s(rOUT,4)}, {s(sT2)} offen
buffer_store_dwordx4 {v(MSG+4,4)}, {v(t+4)}, {s(rOUT,4)}, {s(sT2)} offen offset:16
""")
if STAMP:
    a("s_waitcnt vmcnt(0)")
    stamp(10)
    a(f"""
v_writelane_b32 {v(vSTAMP)}, {s(sSPIN)}, 11
v_writelane_b32 {v(vSTAMP)}, {s(sN)}, 12
s_mov_b32 {s(rWS+2)}, 0x400000
s_lshl_b32 {s(sT0)}, s2, 3
s_add_u32 {s(sT0)}, {s(sT0)}, {s(sW)}
s_lshl_b32 {s(sT0)}, {s(sT0)}, 6
s_add_u32 {s(sT0)}, {s(sT0)}, {ST_OFF:#x}
v_lshlrev_b32 {v(t+7)}, 2, {v(vL)}
s_mov_b64 exec, 0xffff
buffer_store_dword {v(vSTAMP)}, {v(t+7)}, {s(rWS,4)}, {s(sT0)} offen
""")
a("""
L_end:
s_endpgm
""")
a(f"""
L_slow:
s_mov_b32 {s(sMODE)}, 1
s_mov_b32 {s(sBASE)}, 0
s_mov_b32 {s(sHAVE)}, 0
s_mov_b64 {s(sPEND,2)}, 0
s_branch L_slow_round
L_slow_next:
s_cmp_eq_u32 {s(sMODE)}, 2
s_cbranch_scc1 L_epi
s_lshl_b32 {s(sT0)}, {s(sN)}, 6
v_subrev_u32 {v(vT)}, {s(sT0)}, {v(vT)}
v_subrev_u32 {v(vS)}, {s(sT0)}, {v(vS)}
s_lshl_b32 {s(sT0)}, {s(sN)}, 8
v_subrev_u32 {v(vLx)}, {s(sT0)}, {v(vLx)}
v_subrev_u32 {v(vLe)}, {s(sT0)}, {v(vLe)}
s_and_b32 {s(sT0)}, {s(sN)}, {R-1}
s_mul_i32 {s(sT0)}, {s(sT0)}, {SLOT}
v_subrev_u32 {v(vX0)}, {s(sT0)}, {v(vX0)}
v_subrev_u32 {v(vX1)}, {s(sT0)}, {v(vX1)}
v_subrev_u32 {v(vEp)}, {s(sT0)}, {v(vEp)}
L_slow_round:
s_waitcnt vmcnt(0) lgkmcnt(0)
s_barrier
""")
assert R & (R - 1) == 0
init_lists()
a(f"""
L_slow_fill:
s_waitcnt lgkmcnt(0)
s_barrier
s_cmp_lg_u32 {s(sHAVE)}, 0
s_cbranch_scc1 L_slow_place
v_add_u32 {v(vSX+1)}, {s(sBASE)}, v0
v_lshlrev_b32 {v(t)}, 2, {v(vSX+1)}
buffer_load_dword {v(vSD)}, {v(t)}, {s(rDST,4)}, 0 offen
buffer_load_dword {v(vSX)}, {v(t)}, {s(rSRC,4)}, 0 offen
s_mul_i32 {s(sT0)}, s2, {NPB}
s_mov_b32 {s(sT1)}, {E}
s_add_u32 {s(sBASE)}, {s(sBASE)}, 512
s_waitcnt vmcnt(0)
v_subrev_u32 {v(vSD)}, {s(sT0)}, {v(vSD)}
v_cmp_gt_u32 vcc, {NPB}, {v(vSD)}
v_cmp_gt_u32 {s(sPEND,2)}, {s(sT1)}, {v(vSX+1)}
v_add_u32 {v(vSD)}, 1, {v(vSD)}
s_and_b64 {s(sPEND,2)}, {s(sPEND,2)}, vcc
L_slow_place:
s_mov_b64 exec, {s(sPEND,2)}
""")
place_issue(vSD, D + 1, D + 2)
a("s_waitcnt lgkmcnt(0)")
place_finish(vSD, D + 1, D + 2, vSX, None)
a(f"""
s_andn2_b64 {s(sPEND,2)}, {s(sPEND,2)}, exec
s_mov_b64 exec, -1
v_mov_b32 {v(t+6)}, {CNT}
s_waitcnt lgkmcnt(0)
s_barrier
ds_read_b64 {v(t,2)}, {v(t+6)}
s_waitcnt lgkmcnt(0)
v_readfirstlane_b32 {s(sT0)}, {v(t)}
v_readfirstlane_b32 {s(sT1)}, {v(t+1)}
s_max_u32 {s(sN)}, {s(sT0)}, {s(sT1)}
s_cmp_gt_u32 {s(sN)}, {CAP}
s_cselect_b32 {s(sHAVE)}, 1, 0
s_min_u32 {s(sN)}, {s(sN)}, {CAP}
s_cmp_lg_u32 {s(sHAVE)}, 0
s_cbranch_scc1 L_process
s_cmp_lt_u32 {s(sBASE)}, {E}
s_cbranch_scc1 L_slow_fill
s_mov_b32 {s(sMODE)}, 2
s_branch L_process
""")
a(f"""
.section .rodata,"a"
.p2align 6
.amdhsa_kernel {name}
  .amdhsa_next_free_vgpr {a.vmax}
  .amdhsa_next_free_sgpr {max(a.smax, 32)}
  .amdhsa_accum_offset {(a.vmax+3)//4*4}
  .amdhsa_group_segment_fixed_size 0
  .amdhsa_kernarg_size 72
  .amdhsa_user_sgpr_count 2
  .amdhsa_user_sgpr_kernarg_segment_ptr 1
  .amdhsa_system_sgpr_workgroup_id_x 1
  .amdhsa_float_denorm_mode_32 3
  .amdhsa_float_denorm_mode_16_64 3
.end_amdhsa_kernel
""")
open(out_path, "w").write(a.text())
print("vgprs", a.vmax, "sgprs", a.smax, "LDS", INIT_END, "lines", len(a.lines))
```

```python
import sys
from asmlib import *

STAMP = "--stamp" in sys.argv
out_path = [a for a in sys.argv[1:] if not a.startswith("--")][0]

N, E = 10000, 160000
NB, NPB, NS = 250, 40, 20
NP, EPP = 64, 2500
R = 4
CAP = 448
XT = 8704
SLOT = XT + 1024
RING_ST = R * SLOT
S_BASE = 2 * RING_ST
S_ROW = CAP * 2 + 16
S_ROWS = 52
L_BASE = S_BASE + S_ROWS * S_ROW
L_ST = (CAP + 32 * (R + 1)) * 8
CNT = L_BASE + 2 * L_ST
INIT_END = CNT + 16
AGG = 147456
XOWN = 147456
W1L, W2L, W3L = 0, 32768, 65536
IMG, HDR = 32768, 73728
WUL = S_BASE
LDS_BYTES = 163840
assert INIT_END <= AGG and WUL + 65536 <= XOWN
EP_OFF = 0x200000
ST_OFF = 0x300000
NLOG2E = 0xBFB8AA3B
NLN2 = 0xBF317218

a = Asm()
a.snext = 4
sP = a.salloc(18, 4)
pX, pE, pSRC, pDST, pWM, pWU, pOUT, pDBG, pWS = [sP + 2 * i for i in range(9)]
rX = a.salloc(4, 4); rXI = a.salloc(4, 4); rEI = a.salloc(4, 4); rSRC = a.salloc(4, 4); rDST = a.salloc(4, 4)
rWM = a.salloc(4, 4); rWU = a.salloc(4, 4); rOUT = a.salloc(4, 4); rWS = a.salloc(4, 4)
sW = a.salloc(); sCB = a.salloc(); sST = a.salloc(); sEP = a.salloc(); sTAG = a.salloc()
sT0 = a.salloc(); sT1 = a.salloc(); sT2 = a.salloc(); sT3 = a.salloc()
sC1 = a.salloc(2, 2)
sC2 = a.salloc(2, 2)
sM = a.salloc(2, 2); sM2 = a.salloc(2, 2); sPEND = a.salloc(2, 2); sL7 = a.salloc(2, 2)
sN = a.salloc(); sTAU = a.salloc(); sSLOT = a.salloc(); sDX = a.salloc(); sSTEP = a.salloc()
sMODE = a.salloc(); sBASE = a.salloc(); sSPIN = a.salloc(); sRB = a.salloc(); sREND = a.salloc(); sHAVE = a.salloc()
NSTAMP = 10
sSTAMP = a.salloc(2, 2) if STAMP else None
assert a.smax <= 102, a.smax

a.vnext = 1
vL = a.valloc()
vTID16 = a.valloc()
vOFF = a.valloc()
vX0 = a.valloc(); vX1 = a.valloc(); vEp = a.valloc(); vS = a.valloc(); vT = a.valloc(); vLx = a.valloc(); vLe = a.valloc()
vEB = a.valloc()
pI0 = a.valloc(2, 2); pI1 = a.valloc(2, 2); pIE = a.valloc(2, 2)
vSX = a.valloc(2, 2); vSD = a.valloc()
vONE = a.valloc(); vBF1 = a.valloc(); vSTAMP = a.valloc()
t = a.valloc(16, 4)
W1 = a.valloc(32, 4); W3 = a.valloc(4, 4); Q = a.valloc(8, 4); AG = a.valloc(16, 4); U = a.valloc(16, 4); WB = a.valloc(32, 4)
D = a.valloc(16, 4); TM = a.valloc(16, 4)
MSG = a.valloc(8, 4); XA = a.valloc(32, 4); EA = a.valloc(4, 4); TA = a.valloc(8, 4); SB = a.valloc(8, 4)
assert TM == D + 16
assert a.vmax <= 256, a.vmax

def stamp(k):
    if STAMP:
        a(f"{'s_memtime' if '--cyc' in sys.argv else 's_memrealtime'} {s(sSTAMP,2)}")
        a("s_waitcnt lgkmcnt(0)")
        a(f"v_writelane_b32 {v(vSTAMP)}, {s(sSTAMP)}, {k}")

def srd(r, p, nrec, stride=0):
    a(f"s_mov_b32 {s(r)}, {s(p)}")
    if stride:
        a(f"s_or_b32 {s(r+1)}, {s(p+1)}, {stride<<16:#x}")
    else:
        a(f"s_mov_b32 {s(r+1)}, {s(p+1)}")
    a(f"s_mov_b32 {s(r+2)}, {nrec:#x}")
    a(f"s_mov_b32 {s(r+3)}, 0x20000")

def mfma(d, A, B, c):
    cs = "0" if c is None else v(c, 16)
    a(f"v_mfma_f32_32x32x16_bf16 {v(d,16)}, {v(A,4)}, {v(B,4)}, {cs}")

def dma_block(rs, n, ldsbase_s, soff_s):
    a(f"s_mov_b32 m0, {s(ldsbase_s)}")
    a("s_nop 0")
    for i in range(n):
        a(f"buffer_load_dwordx4 {v(vOFF)}, {s(rs,4)}, {s(soff_s)} offen offset:{i*1024} lds")

name = "standalone__mpnn_edge_mlp__graph_kernel"
hdr = open("standalone__mpnn_edge_mlp__graph.s.ref").read().split("; Override launch")[0]
a.lines.append(hdr.rstrip("\n"))
a.lines.append(f"; @launch grid=({NB},1,1) block=(512,1,1) lds={LDS_BYTES}")
a(f""".amdgcn_target "amdgcn-amd-amdhsa--gfx950"
.text
.globl {name}
.p2align 8
.type {name},@function
{name}:""")
a(f"""
s_cmp_ge_u32 s2, {NB}
s_cbranch_scc1 L_end
s_load_dwordx16 {s(sP,16)}, s[0:1], 0
s_load_dwordx2 {s(pWS,2)}, s[0:1], 64
""")
if STAMP: a(f"v_mov_b32 {v(vSTAMP)}, 0")
stamp(0)
a(f"""
v_and_b32 {v(vL)}, 63, v0
v_lshrrev_b32 {v(t)}, 6, v0
v_lshlrev_b32 {v(vTID16)}, 4, v0
v_readfirstlane_b32 {s(sW)}, {v(t)}
v_lshrrev_b32 {v(t+1)}, 4, {v(vL)}
v_and_b32 {v(t+2)}, 15, {v(vL)}
v_lshlrev_b32 {v(t+3)}, 2, {v(t+1)}
v_xor_b32 {v(t+2)}, {v(t+2)}, {v(t+3)}
v_lshlrev_b32 {v(t+2)}, 4, {v(t+2)}
v_lshl_add_u32 {v(vOFF)}, {v(t+1)}, 8, {v(t+2)}
s_and_b32 {s(sCB)}, {s(sW)}, 3
s_lshr_b32 {s(sST)}, {s(sW)}, 2
s_lshl_b32 {s(sT0)}, s2, 2
s_add_u32 {s(sT0)}, {s(sT0)}, {EP_OFF:#x}
s_waitcnt lgkmcnt(0)
s_load_dword {s(sEP)}, {s(pWS,2)}, {s(sT0)}
""")
srd(rDST, pDST, E * 4); srd(rSRC, pSRC, E * 4); srd(rWS, pWS, EP_OFF + 1024)
PD, PS, PE = XA, XA + 8, XA + 16
a(f"""
s_cmp_ge_u32 s2, {NP}
s_cbranch_scc1 L_noprod1
s_mul_i32 {s(sT0)}, s2, {EPP*4}
s_add_u32 {s(sT1)}, {s(sT0)}, 8192
v_lshlrev_b32 {v(t)}, 2, v0
v_lshrrev_b32 {v(t+1)}, 3, v0
v_lshlrev_b32 {v(t+1)}, 2, {v(t+1)}
s_mov_b32 {s(sT2)}, {EP_OFF:#x}
buffer_load_dwordx4 {v(PD,4)}, {v(vTID16)}, {s(rDST,4)}, {s(sT0)} offen
buffer_load_dword {v(PD+4)}, {v(t)}, {s(rDST,4)}, {s(sT1)} offen
buffer_load_dwordx4 {v(PS,4)}, {v(vTID16)}, {s(rSRC,4)}, {s(sT0)} offen
buffer_load_dword {v(PS+4)}, {v(t)}, {s(rSRC,4)}, {s(sT1)} offen
""")
for j in range(4):
    a(f"buffer_load_dword {v(PE+j)}, {v(t+1)}, {s(rWS,4)}, {s(sT2)} offen offset:{j*256}")
a("L_noprod1:")
srd(rWU, pWU, 65536); srd(rX, pX, N * 256); srd(rWM, pWM, 272 * 256)
a(f"s_lshl_b32 {s(sT0)}, {s(sW)}, 12")
dma_block(rWM, 4, sT0, sT0)
a(f"""
s_lshl_b32 {s(sT1)}, {s(sW)}, 10
s_add_u32 {s(sT1)}, {s(sT1)}, {W3L}
""")
dma_block(rWM, 1, sT1, sT1)
a(f"""
s_mul_i32 {s(sT2)}, s2, {NPB*256}
s_lshl_b32 {s(sT1)}, {s(sW)}, 11
s_add_u32 {s(sT2)}, {s(sT2)}, {s(sT1)}
s_cmp_ge_u32 {s(sW)}, 5
s_cselect_b32 {s(sT2)}, 0x400000, {s(sT2)}
s_add_u32 {s(sT1)}, {s(sT1)}, {XOWN}
""")
dma_block(rX, 2, sT1, sT2)
a(f"""
s_lshl_b32 {s(sT2)}, {s(sW)}, 13
s_add_u32 {s(sT1)}, {s(sT2)}, {WUL}
""")
dma_block(rWU, 4, sT1, sT2)
a(f"""
s_add_u32 {s(sT1)}, {s(sT1)}, 4096
s_add_u32 {s(sT2)}, {s(sT2)}, 4096
""")
dma_block(rWU, 4, sT1, sT2)
srd(rXI, pX, N, 256); srd(rEI, pE, E, 32); srd(rOUT, pOUT, N * 256)
a(f"""
s_mov_b32 {s(sL7)}, 0x80808080
s_mov_b32 {s(sL7+1)}, 0x80808080
s_mov_b32 {s(sC1)}, {NLOG2E:#x}
s_mov_b32 {s(sC1+1)}, {NLOG2E:#x}
s_mov_b32 {s(sC2)}, {NLN2:#x}
s_mov_b32 {s(sC2+1)}, {NLN2:#x}
v_mov_b32 {v(vONE)}, 1
v_mov_b32 {v(vBF1)}, 0x3f80
""")
HK = 0x9E3779B1
HX = 0x5BD1E995
a(f"""
s_cmp_ge_u32 s2, {NP}
s_cbranch_scc1 L_noprod2
v_mov_b32 {v(t)}, 0
v_mov_b32 {v(t+1)}, 0
v_mov_b32 {v(t+2)}, 0
v_mov_b32 {v(t+3)}, 0
v_lshlrev_b32 {v(t+4)}, 2, v0
v_add_u32 {v(t+4)}, {HDR}, {v(t+4)}
""")
for j in range(4):
    a(f"ds_write_b128 {v(vTID16)}, {v(t,4)} offset:{IMG + j*8192}")
a(f"""
ds_write_b32 {v(t+4)}, {v(t)}
s_mov_b32 {s(sT0)}, 52429
v_lshlrev_b32 {v(t+5)}, 8, v0
v_lshlrev_b32 {v(t+6)}, 6, v0
v_add_u32 {v(t+6)}, {2048*64}, {v(t+6)}
v_cmp_gt_u32 {s(sM,2)}, {EPP-2048}, v0
s_waitcnt lgkmcnt(0)
s_barrier
s_waitcnt vmcnt(19)
""".replace(f"v_cmp_gt_u32 {s(sM,2)}, {EPP-2048}, v0", f"v_cmp_gt_u32 vcc, {EPP-2048}, v0\ns_mov_b64 {s(sM,2)}, vcc"))
stamp(1)
PB, PR, PO = D, D + 6, D + 16
assert PR % 2 == 0 and PO % 2 == 0
for j in range(5):
    a(f"""
v_mul_u32_u24 {v(PB+j)}, {s(sT0)}, {v(PD+j)}
v_lshrrev_b32 {v(PB+j)}, 21, {v(PB+j)}
v_mul_u32_u24 {v(t+7)}, {NPB}, {v(PB+j)}
v_sub_u32 {v(t+7)}, {v(PD+j)}, {v(t+7)}
v_lshlrev_b32 {v(t+8)}, 18, {v(PS+j)}
""")
    if j < 4:
        a(f"v_add3_u32 {v(t+7)}, {v(t+7)}, {v(t+5)}, {v(t+8)}")
        a(f"v_add_u32 {v(PR+2*j+1)}, {1 + 64*j}, {v(t+7)}")
    else:
        a(f"v_add3_u32 {v(t+7)}, {v(t+7)}, {v(t+6)}, {v(t+8)}")
        a(f"v_add_u32 {v(PR+2*j+1)}, 1, {v(t+7)}")
        a(f"s_mov_b64 exec, {s(sM,2)}")
    a(f"""
v_mov_b32 {v(PR+2*j)}, 1
v_lshlrev_b32 {v(t+9+j)}, 3, {v(PB+j)}
v_add_u32 {v(t+9+j)}, {HDR}, {v(t+9+j)}
ds_add_rtn_u64 {v(PO+2*j,2)}, {v(t+9+j)}, {v(PR+2*j,2)}
""")
a("s_mov_b64 exec, -1")
for j in range(5):
    lab = a.label("L_ovf"); lab2 = a.label("L_ovfr")
    if j == 4:
        a(f"s_mov_b64 exec, {s(sM,2)}")
    a(f"""
s_waitcnt lgkmcnt({4-j if j<4 else 0})
""" if j == 0 else "")
    if j == 1:
        a("s_waitcnt lgkmcnt(0)")
    sl = PO + 2 * j
    a(f"""
v_cmp_lt_u32 vcc, 22, {v(sl)}
v_lshlrev_b32 {v(PB+j)}, 7, {v(PB+j)}
s_nop 0
v_addc_co_u32 {v(t+7)}, vcc, 0, {v(sl)}, vcc
v_and_b32 {v(t+8)}, 7, {v(t+7)}
v_lshl_add_u32 {v(PB+j)}, {v(t+8)}, 4, {v(PB+j)}
v_lshrrev_b32 {v(t+7)}, 3, {v(t+7)}
v_lshl_add_u32 {v(PB+j)}, {v(t+7)}, 2, {v(PB+j)}
v_cmp_gt_u32 vcc, 30, {v(sl)}
s_and_saveexec_b64 {s(sM2,2)}, vcc
ds_write_b32 {v(PB+j)}, {v(PR+2*j+1)} offset:{IMG}
s_andn2_b64 exec, {s(sM2,2)}, exec
s_cbranch_execz {lab2}
ds_sub_u32 {v(t+9+j)}, {v(PR+2*j+1)} offset:4
{lab2}:
s_mov_b64 exec, -1
""")
a(f"""
v_lshrrev_b32 {v(t+4)}, 3, v0
v_lshlrev_b32 {v(t+5)}, 13, {v(t+4)}
v_lshlrev_b32 {v(t+4)}, 3, {v(t+4)}
v_add_u32 {v(t+4)}, {HDR}, {v(t+4)}
v_and_b32 {v(t+6)}, 7, v0
v_lshl_add_u32 {v(t+5)}, {v(t+6)}, 4, {v(t+5)}
s_lshl_b32 {s(sT0)}, s2, 7
s_mov_b32 {s(sT1)}, {HK:#x}
s_waitcnt lgkmcnt(0)
s_barrier
""")
G, H = D, D + 16
for j in range(4):
    a(f"ds_read_b128 {v(G+4*j,4)}, {v(vTID16)} offset:{IMG + j*8192}")
    a(f"ds_read_b64 {v(H+2*j,2)}, {v(t+4)} offset:{j*512}")
a("s_waitcnt vmcnt(15)")
for j in range(4):
    a(f"v_mul_lo_u32 {v(PE+j)}, {v(PE+j)}, {s(sT1)}")
    a(f"v_xor_b32 {v(PE+j)}, {HX:#x}, {v(PE+j)}")
a(f"s_mov_b32 {s(rWS+2)}, {NB*8192:#x}")
for j in range(4):
    a(f"""
s_waitcnt lgkmcnt({6-2*j})
v_add3_u32 {v(H+2*j+1)}, {v(H+2*j+1)}, {v(H+2*j)}, {v(PE+j)}
v_cndmask_b32 {v(G+4*j+2)}, {v(G+4*j+2)}, {v(H+2*j)}, {s(sL7,2)}
v_cndmask_b32 {v(G+4*j+3)}, {v(G+4*j+3)}, {v(H+2*j+1)}, {s(sL7,2)}
buffer_store_dwordx4 {v(G+4*j,4)}, {v(t+5)}, {s(rWS,4)}, {s(sT0)} offen sc0 sc1
s_add_u32 {s(sT0)}, {s(sT0)}, {64*8192}
""")
a(f"s_mov_b32 {s(rWS+2)}, {EP_OFF+1024:#x}")
stamp(2)
a("""
s_barrier
L_noprod2:
""")
a(f"""
s_lshl_b32 {s(sT0)}, {s(sW)}, 12
s_add_u32 {s(sT0)}, {s(sT0)}, {W2L}
""")
dma_block(rWM, 4, sT0, sT0)
a(f"""
s_lshr_b32 {s(sT0)}, s2, 3
s_mul_i32 {s(sT0)}, {s(sT0)}, {646*128}
v_lshlrev_b32 {v(t)}, 7, v0
s_add_u32 {s(sT1)}, {s(sT0)}, 65536
s_cmp_ge_u32 {s(sW)}, 3
s_cselect_b32 {s(sT1)}, 0x400000, {s(sT1)}
buffer_load_dword {v(vSX)}, {v(t)}, {s(rX,4)}, {s(sT0)} offen
buffer_load_dword {v(vSX+1)}, {v(t)}, {s(rX,4)}, {s(sT1)} offen
""")
vq, vr, vc4, vh, vm = t, t + 1, t + 2, t + 3, t + 4
a(f"""
v_lshrrev_b32 {v(vq)}, 4, {v(vL)}
v_bfe_u32 {v(vr)}, {v(vL)}, 2, 2
v_and_b32 {v(vc4)}, 3, {v(vL)}
v_lshrrev_b32 {v(vh)}, 5, {v(vL)}
v_and_b32 {v(vm)}, 31, {v(vL)}
""")
aW, aWt, aWb, aXo = t + 5, t + 6, t + 7, t + 8
x1, x2, x3 = t + 9, t + 10, t + 11
a(f"""
v_xor_b32 {v(x1)}, {s(sCB)}, {v(vr)}
v_lshlrev_b32 {v(x1)}, 6, {v(x1)}
v_lshl_add_u32 {v(x1)}, {v(vr)}, 8, {v(x1)}
v_and_b32 {v(x2)}, 1, {v(vq)}
""")
a(f"""
v_lshl_add_u32 {v(aW)}, {v(vh)}, 11, {v(x1)}
v_lshl_add_u32 {v(aW)}, {v(x2)}, 5, {v(aW)}
v_lshl_add_u32 {v(aW)}, {v(vc4)}, 3, {v(aW)}
""")
a(f"""
v_and_b32 {v(x3)}, 1, {v(vc4)}
v_lshl_add_u32 {v(x1)}, {v(x3)}, 5, {v(x1)}
v_lshl_add_u32 {v(x1)}, {v(x2)}, 4, {v(x1)}
v_lshrrev_b32 {v(x3)}, 1, {v(vc4)}
v_lshl_add_u32 {v(x1)}, {v(x3)}, 3, {v(x1)}
v_add_u32 {v(x1)}, {WUL}, {v(x1)}
v_lshl_add_u32 {v(aWt)}, {v(vh)}, 11, {v(x1)}
v_lshl_add_u32 {v(aWb)}, {v(vh)}, 10, {v(x1)}
""")
a(f"""
s_mul_i32 {s(sT0)}, {s(sST)}, {NS}
v_add_u32 {v(x1)}, {s(sT0)}, {v(vm)}
v_cmp_gt_u32 vcc, {NS}, {v(vm)}
v_mov_b32 {v(x2)}, {NPB}
s_nop 0
v_cndmask_b32 {v(x2)}, {v(x2)}, {v(x1)}, vcc
v_and_b32 {v(x3)}, 3, {v(x2)}
v_lshlrev_b32 {v(x3)}, 2, {v(x3)}
v_xor_b32 {v(x3)}, {v(x3)}, {v(vh)}
v_lshlrev_b32 {v(x3)}, 4, {v(x3)}
v_lshl_add_u32 {v(aXo)}, {v(x2)}, 8, {v(x3)}
v_add_u32 {v(aXo)}, {XOWN}, {v(aXo)}
""")
a(f"""
s_mov_b32 {s(sT1)}, {S_ROW}
v_mul_lo_u32 {v(vS)}, {v(x1)}, {s(sT1)}
v_lshl_add_u32 {v(vS)}, {v(vh)}, 4, {v(vS)}
v_add_u32 {v(vS)}, {S_BASE}, {v(vS)}
""")
a(f"""
v_lshl_add_u32 {v(x1)}, {v(vh)}, 2, {v(vr)}
v_add_u32 {v(x1)}, {s(sT0)}, {v(x1)}
v_mul_lo_u32 {v(vT)}, {v(x1)}, {s(sT1)}
v_and_b32 {v(x2)}, 1, {v(vq)}
v_lshl_add_u32 {v(vT)}, {v(x2)}, 5, {v(vT)}
v_and_b32 {v(x2)}, 1, {v(vc4)}
v_lshl_add_u32 {v(vT)}, {v(x2)}, 4, {v(vT)}
v_lshrrev_b32 {v(x2)}, 1, {v(vc4)}
v_lshl_add_u32 {v(vT)}, {v(x2)}, 3, {v(vT)}
v_add_u32 {v(vT)}, {S_BASE}, {v(vT)}
""")
a(f"""
s_mul_i32 {s(sRB)}, {s(sST)}, {RING_ST}
s_add_u32 {s(sREND)}, {s(sRB)}, {RING_ST}
v_lshrrev_b32 {v(x1)}, 2, {v(vm)}
v_lshlrev_b32 {v(x1)}, 6, {v(x1)}
v_lshl_add_u32 {v(x1)}, {v(vm)}, 8, {v(x1)}
v_and_b32 {v(x2)}, 3, {v(vm)}
v_xor_b32 {v(x2)}, {v(x2)}, {v(vh)}
v_lshl_add_u32 {v(vX0)}, {v(x2)}, 4, {v(x1)}
v_add_u32 {v(vX0)}, {s(sRB)}, {v(vX0)}
v_xor_b32 {v(vX1)}, 32, {v(vX0)}
v_bfe_u32 {v(x1)}, {v(vm)}, 3, 1
v_xor_b32 {v(x1)}, {v(x1)}, {v(vh)}
v_lshlrev_b32 {v(x1)}, 4, {v(x1)}
v_lshl_add_u32 {v(vEp)}, {v(vm)}, 5, {v(x1)}
v_add_u32 {v(vEp)}, {s(sRB)}, {v(vEp)}
""")
a(f"""
s_mul_i32 {s(sT0)}, {s(sST)}, {L_ST}
s_lshr_b32 {s(sT1)}, {s(sCB)}, 1
s_lshl_b32 {s(sT1)}, {s(sT1)}, 7
s_add_u32 {s(sT0)}, {s(sT0)}, {s(sT1)}
s_and_b32 {s(sT2)}, {s(sCB)}, 1
s_lshl_b32 {s(sT1)}, {s(sT2)}, 5
s_add_u32 {s(sT0)}, {s(sT0)}, {s(sT1)}
s_add_u32 {s(sT0)}, {s(sT0)}, {L_BASE}
v_lshlrev_b32 {v(vLx)}, 3, {v(vq)}
v_add_u32 {v(vLx)}, {s(sT0)}, {v(vLx)}
v_bfe_u32 {v(x1)}, {v(vL)}, 3, 2
v_lshlrev_b32 {v(x1)}, 3, {v(x1)}
v_lshl_add_u32 {v(x1)}, {v(vh)}, 6, {v(x1)}
v_add_u32 {v(vLe)}, {s(sT0)}, {v(x1)}
v_and_b32 {v(x1)}, 15, {v(vL)}
v_xor_b32 {v(x1)}, {v(x1)}, {v(vq)}
v_lshlrev_b32 {v(pI0+1)}, 4, {v(x1)}
v_mov_b32 {v(pI1+1)}, {v(pI0+1)}
s_lshl_b32 {s(sT2)}, {s(sT2)}, 2
v_and_b32 {v(x1)}, 7, {v(vL)}
v_xor_b32 {v(x1)}, {s(sT2)}, {v(x1)}
v_lshlrev_b32 {v(pIE+1)}, 2, {v(x1)}
s_mul_i32 {s(sDX)}, {s(sCB)}, {2*1088}
v_lshrrev_b32 {v(x1)}, 3, v0
v_mul_u32_u24 {v(vEB)}, {EPP}, {v(x1)}
""")
a(f"""
s_cmp_ge_u32 s2, {NP}
s_cbranch_scc1 L_w1
s_waitcnt vmcnt(10)
s_branch L_w2
L_w1:
s_waitcnt vmcnt(6)
L_w2:
s_barrier
""")
stamp(3)
for ks in range(8):
    a(f"v_xor_b32 {v(x1)}, {ks*32}, {v(aXo)}")
    a(f"ds_read_b128 {v(XA+4*ks,4)}, {v(x1)}")
for ks in range(8):
    for h2 in range(2):
        a(f"ds_read_b64_tr_b16 {v(D+4*ks+2*h2,2)}, {v(aWt)} offset:{ks*4096 + h2*1024}")
for ks in range(8):
    for h2 in range(2):
        a(f"ds_read_b64_tr_b16 {v(WB+4*ks+2*h2,2)}, {v(aWb)} offset:{32768 + ks*4096 + h2*2048}")
a("s_waitcnt lgkmcnt(15)")
a("s_waitcnt lgkmcnt(0)")
for ks in range(8):
    mfma(U, D + 4 * ks, XA + 4 * ks, None if ks == 0 else U)
for ks in range(8):
    for h2 in range(2):
        a(f"ds_read_b64_tr_b16 {v(W1+4*ks+2*h2,2)}, {v(aW)} offset:{W1L + ks*4096 + h2*1024}")
a(f"v_add_u32 {v(x1)}, {W3L}, {v(aW)}")
for h2 in range(2):
    a(f"ds_read_b64_tr_b16 {v(W3+2*h2,2)}, {v(x1)} offset:{h2*1024}")
a("""
s_waitcnt vmcnt(2)
s_barrier
""")
stamp(4)
for ks in range(8):
    for h2 in range(2):
        a(f"ds_read_b64_tr_b16 {v(D+4*ks+2*h2,2)}, {v(aW)} offset:{W2L + ks*4096 + h2*1024}")

def init_lists():
    z, o, ad = t + 4, t + 8, t + 12
    for i in range(4):
        a(f"v_mov_b32 {v(z+i)}, 0")
        a(f"v_mov_b32 {v(o+i)}, 0x100000")
    a(f"v_add_u32 {v(ad)}, {S_BASE}, {v(vTID16)}")
    sbytes = S_ROWS * S_ROW
    full = sbytes // 8192
    for j in range(full):
        a(f"ds_write_b128 {v(ad)}, {v(z,4)} offset:{j*8192}")
    rem = sbytes - full * 8192
    assert rem % 16 == 0
    a(f"v_cmp_gt_u32 vcc, {rem//16}, v0")
    a(f"s_and_saveexec_b64 {s(sM,2)}, vcc")
    a(f"ds_write_b128 {v(ad)}, {v(z,4)} offset:{full*8192}")
    a(f"s_mov_b64 exec, -1")
    lbytes = 2 * L_ST
    assert 8192 < lbytes <= 16384 and lbytes % 16 == 0
    a(f"ds_write_b128 {v(ad)}, {v(o,4)} offset:{L_BASE - S_BASE}")
    a(f"v_cmp_gt_u32 vcc, {(lbytes-8192)//16}, v0")
    a(f"s_and_saveexec_b64 {s(sM,2)}, vcc")
    a(f"ds_write_b128 {v(ad)}, {v(o,4)} offset:{L_BASE - S_BASE + 8192}")
    a(f"s_mov_b64 exec, -1")
    a(f"v_cmp_eq_u32 vcc, 0, v0")
    a(f"s_and_saveexec_b64 {s(sM,2)}, vcc")
    a(f"ds_write_b128 {v(ad)}, {v(z,4)} offset:{CNT - S_BASE}")
    a(f"s_mov_b64 exec, -1")
init_lists()
a("s_waitcnt lgkmcnt(0)")
for ks in range(8):
    mfma(AG, XA + 4 * ks, D + 4 * ks, None if ks == 0 else AG)
for i in list(range(W1, W1 + 32)) + list(range(W3, W3 + 4)):
    tt = t + 2 * (i % 4)
    a(f"""
v_lshlrev_b32 {v(tt)}, 16, {v(i)}
v_and_b32 {v(tt+1)}, 0xffff0000, {v(i)}
v_mul_f32 {v(tt)}, {s(sC1)}, {v(tt)}
v_mul_f32 {v(tt+1)}, {s(sC1)}, {v(tt+1)}
v_cvt_pk_bf16_f32 {v(i)}, {v(tt)}, {v(tt+1)}
""")
for i in range(8):
    a(f"v_pk_mul_f32 {v(AG+2*i,2)}, {v(AG+2*i,2)}, {s(sC1,2)}")
for i in range(8):
    a(f"v_cvt_pk_bf16_f32 {v(Q+i)}, {v(AG+2*i)}, {v(AG+2*i+1)}")
for i in range(16):
    a(f"v_mov_b32 {v(AG+i)}, 0")
a(f"""
s_mul_i32 {s(sTAG)}, {s(sEP)}, {HK:#x}
s_xor_b32 {s(sTAG)}, {s(sTAG)}, {HX:#x}
s_add_u32 {s(sT0)}, {s(sTAG)}, 1
v_mov_b32 {v(t+4)}, 0
v_mov_b32 {v(t+5)}, {s(sT0)}
v_cndmask_b32 {v(t+5)}, {v(t+4)}, {v(t+5)}, {s(sL7,2)}
v_cndmask_b32 {v(t+4)}, 0, -1, {s(sL7,2)}
s_lshl_b32 {s(sT1)}, s2, 13
s_mov_b32 {s(sSPIN)}, 0
s_mov_b32 {s(sMODE)}, 0
s_barrier
""")
stamp(5)
C = t
a(f"""
L_poll:
buffer_load_dwordx4 {v(C,4)}, {v(vTID16)}, {s(rWS,4)}, {s(sT1)} offen sc0 sc1
s_waitcnt vmcnt(0)
v_xor_b32 {v(t+6)}, {v(C+3)}, {v(t+4)}
v_add3_u32 {v(t+7)}, {v(C)}, {v(C+1)}, {v(C+2)}
v_add3_u32 {v(t+6)}, {v(t+6)}, {v(t+7)}, {v(t+5)}
s_nop 1
v_add_u32_dpp {v(t+6)}, {v(t+6)}, {v(t+6)} quad_perm:[1,0,3,2] row_mask:0xf bank_mask:0xf
s_nop 1
v_add_u32_dpp {v(t+6)}, {v(t+6)}, {v(t+6)} quad_perm:[2,3,0,1] row_mask:0xf bank_mask:0xf
s_nop 1
v_add_u32_dpp {v(t+6)}, {v(t+6)}, {v(t+6)} row_half_mirror row_mask:0xf bank_mask:0xf
s_add_u32 {s(sSPIN)}, {s(sSPIN)}, 1
v_cmp_ne_u32 vcc, 0, {v(t+6)}
s_cbranch_vccz L_got
s_cmp_lt_u32 {s(sSPIN)}, 0x8000
s_cbranch_scc0 L_end
s_sleep 2
s_branch L_poll
L_got:
""")
stamp(6)
a(f"""
v_cmp_lt_u32 vcc, 30, {v(C+2)}
s_and_b64 vcc, vcc, {s(sL7,2)}
v_cndmask_b32 {v(C+2)}, {v(C+2)}, 0, {s(sL7,2)}
v_cndmask_b32 {v(C+3)}, {v(C+3)}, 0, {s(sL7,2)}
s_cbranch_vccz L_noflag
v_mov_b32 {v(t+6)}, {CNT+8}
ds_write_b32 {v(t+6)}, {v(vONE)}
L_noflag:
""")
def place_issue(dl1, pos, ca):
    a(f"""
v_cmp_lt_u32 vcc, {NS}, {v(dl1)}
v_mov_b32 {v(ca)}, {CNT}
s_nop 0
v_addc_co_u32 {v(pos)}, vcc, 0, 0, vcc
""".replace(f"v_addc_co_u32 {v(pos)}, vcc, 0, 0, vcc", f"v_cndmask_b32 {v(pos)}, 0, {v(vONE)}, vcc"))
    a(f"""
v_lshl_add_u32 {v(ca)}, {v(pos)}, 2, {v(ca)}
v_mul_u32_u24 {v(ca+1)}, {L_ST}, {v(pos)}
ds_add_rtn_u32 {v(pos)}, {v(ca)}, {v(vONE)}
""")
def place_finish(dl1, pos, ca, pair, okmask):
    a(f"""
v_cmp_gt_u32 vcc, {CAP}, {v(pos)}
s_and_b64 exec, exec, vcc
v_lshl_add_u32 {v(ca+1)}, {v(pos)}, 3, {v(ca+1)}
v_add_u32 {v(ca+1)}, {L_BASE}, {v(ca+1)}
v_mul_u32_u24 {v(ca)}, {S_ROW}, {v(dl1)}
v_lshl_add_u32 {v(ca)}, {v(pos)}, 1, {v(ca)}
v_add_u32 {v(ca)}, {S_BASE - S_ROW}, {v(ca)}
ds_write_b64 {v(ca+1)}, {v(pair,2)}
ds_write_b16 {v(ca)}, {v(vBF1)}
""")
for jj in range(2):
    skip = a.label("L_pl")
    if jj == 1:
        a(f"""
v_or_b32 {v(t+6)}, {v(C+2)}, {v(C+3)}
v_cmp_ne_u32 vcc, 0, {v(t+6)}
s_cbranch_vccz {skip}
""")
    regs = []
    for k in range(2):
        j = 2 * jj + k
        b = D + 8 * k
        dl1, pos, ca, pair = b, b + 1, b + 2, b + 4
        msk = [sM, sM2][k]
        regs.append((dl1, pos, ca, pair, msk))
        a(f"""
v_cmp_ne_u32 vcc, 0, {v(C+j)}
s_mov_b64 {s(msk,2)}, vcc
s_mov_b64 exec, vcc
v_and_b32 {v(dl1)}, 63, {v(C+j)}
""")
        place_issue(dl1, pos, ca)
        a(f"""
v_lshrrev_b32 {v(pair)}, 18, {v(C+j)}
v_bfe_u32 {v(pair+1)}, {v(C+j)}, 6, 12
v_add_u32 {v(pair+1)}, {v(pair+1)}, {v(vEB)}
s_mov_b64 exec, -1
""")
    a("s_waitcnt lgkmcnt(0)")
    for (dl1, pos, ca, pair, msk) in regs:
        a(f"s_mov_b64 exec, {s(msk,2)}")
        place_finish(dl1, pos, ca, pair, None)
    a("s_mov_b64 exec, -1")
    if jj == 1:
        a(f"{skip}:")
a(f"""
v_mov_b32 {v(t+6)}, {CNT}
s_waitcnt lgkmcnt(0)
s_barrier
ds_read_b128 {v(t,4)}, {v(t+6)}
""")
def list_reads(off):
    a(f"ds_read_b32 {v(pI0)}, {v(vLx)} offset:{off}")
    a(f"ds_read_b32 {v(pI1)}, {v(vLx)} offset:{off+64}")
    a(f"ds_read_b32 {v(pIE)}, {v(vLe)} offset:{off+4}")
a(f"""
s_waitcnt lgkmcnt(0)
v_readfirstlane_b32 {s(sT0)}, {v(t)}
v_readfirstlane_b32 {s(sT1)}, {v(t+1)}
v_readfirstlane_b32 {s(sT2)}, {v(t+2)}
s_max_u32 {s(sT3)}, {s(sT0)}, {s(sT1)}
s_cmp_gt_u32 {s(sT3)}, {CAP}
s_cbranch_scc1 L_slow
s_cmp_lg_u32 {s(sT2)}, 0
s_cbranch_scc1 L_slow
s_cmp_eq_u32 {s(sST)}, 0
s_cselect_b32 {s(sN)}, {s(sT0)}, {s(sT1)}
L_process:
s_add_u32 {s(sN)}, {s(sN)}, 31
s_lshr_b32 {s(sN)}, {s(sN)}, 5
s_cmp_eq_u32 {s(sN)}, 0
s_cbranch_scc1 L_loopdone
""")
stamp(7)
def dma_tile():
    a(f"""
s_add_u32 m0, {s(sSLOT)}, {s(sDX)}
s_lshl_b32 {s(sT0)}, {s(sCB)}, 8
buffer_load_dwordx4 {v(pI0,2)}, {s(rXI,4)}, 0 idxen offen lds
s_add_u32 m0, m0, 1088
s_add_u32 {s(sT0)}, {s(sT0)}, {s(sSLOT)}
buffer_load_dwordx4 {v(pI1,2)}, {s(rXI,4)}, 0 idxen offen lds
s_add_u32 m0, {s(sT0)}, {XT}
s_add_u32 {s(sSLOT)}, {s(sSLOT)}, {SLOT}
buffer_load_dword {v(pIE,2)}, {s(rEI,4)}, 0 idxen offen lds
s_cmp_eq_u32 {s(sSLOT)}, {s(sREND)}
s_cselect_b32 {s(sSLOT)}, {s(sRB)}, {s(sSLOT)}
""")
a(f"s_mov_b32 {s(sSLOT)}, {s(sRB)}")
for k in range(R):
    list_reads(k * 256)
    a("s_waitcnt lgkmcnt(0)")
    dma_tile()
def frag_reads():
    for ks in range(8):
        a(f"ds_read_b128 {v(XA+4*ks,4)}, {v([vX0,vX1][ks&1])} offset:{(ks>>1)*64}")
    a(f"ds_read_b128 {v(EA,4)}, {v(vEp)} offset:{XT}")
    for u in range(2):
        for h2 in range(2):
            a(f"ds_read_b64_tr_b16 {v(TA+4*u+2*h2,2)}, {v(vT)} offset:{(16*u+8*h2)*S_ROW}")
for i in range(8):
    a(f"v_mov_b32 {v(MSG+i)}, 0")
    a(f"v_mov_b32 {v(SB+i)}, 0")
a(f"""
s_mov_b32 {s(sTAU)}, 0
s_mov_b32 {s(sSTEP)}, 1
s_waitcnt vmcnt({3*(R-1)})
s_barrier
""")
frag_reads()
list_reads(R * 256)
stamp(8)
def sync():
    a(f"s_waitcnt vmcnt({3*(R-2)})")
    if "--nobar" not in sys.argv: a("s_barrier")
    if "--nodma" not in sys.argv: dma_tile()
a(f"""
.p2align 6
L_loop:
s_waitcnt lgkmcnt(0)
s_cmp_eq_u32 {s(sST)}, 0
s_cbranch_scc0 L_nosyncA
""")
sync()
a("L_nosyncA:")
if "--prio" in sys.argv: a("s_setprio 1")
mfma(AG, MSG, SB, AG)
mfma(AG, MSG + 4, SB + 4, AG)
mfma(D, EA, W3, None)
mfma(D, TA, Q, D)
mfma(D, TA + 4, Q + 4, D)
for ks in range(0 if "--nomfma" in sys.argv else 8):
    mfma(D, XA + 4 * ks, W1 + 4 * ks, D)
a(f"""
s_cmp_eq_u32 {s(sST)}, 0
s_cbranch_scc1 L_nosyncB
""")
sync()
a("L_nosyncB:")
a(f"""
s_cmp_eq_u32 {s(sSTEP)}, {R}
s_cselect_b32 {s(sT1)}, {-(R-1)*SLOT & 0xffffffff:#x}, {SLOT}
s_cselect_b32 {s(sSTEP)}, 0, {s(sSTEP)}
s_add_u32 {s(sSTEP)}, {s(sSTEP)}, 1
ds_read_b128 {v(SB,4)}, {v(vS)}
ds_read_b128 {v(SB+4,4)}, {v(vS)} offset:32
v_add_u32 {v(vX0)}, {s(sT1)}, {v(vX0)}
v_add_u32 {v(vX1)}, {s(sT1)}, {v(vX1)}
v_add_u32 {v(vEp)}, {s(sT1)}, {v(vEp)}
v_add_u32 {v(vT)}, 64, {v(vT)}
v_add_u32 {v(vS)}, 64, {v(vS)}
v_add_u32 {v(vLx)}, 0x100, {v(vLx)}
v_add_u32 {v(vLe)}, 0x100, {v(vLe)}
""".replace(f"s_cselect_b32 {s(sT1)}, {-(R-1)*SLOT & 0xffffffff:#x}, {SLOT}",
            f"s_mov_b32 {s(sT1)}, {SLOT}\ns_cselect_b32 {s(sT1)}, {-(R-1)*SLOT & 0xffffffff:#x}, {s(sT1)}"))
if "--nods" not in sys.argv:
    frag_reads()
    list_reads(R * 256)
else:
    a("s_nop 15")
if "--prio" in sys.argv: a("s_setprio 0")
NV = 0 if "--novalu" in sys.argv else 1
for i in range(16*NV):
    a(f"v_exp_f32 {v(TM+i)}, {v(D+i)}")
for i in range(16*NV):
    a(f"v_add_f32 {v(TM+i)}, 1.0, {v(TM+i)}")
for i in range(16*NV):
    a(f"v_rcp_f32 {v(TM+i)}, {v(TM+i)}")
for i in range(8*NV):
    a(f"v_pk_mul_f32 {v(TM+2*i,2)}, {v(TM+2*i,2)}, {v(D+2*i,2)}")
for i in range(8):
    a(f"v_cvt_pk_bf16_f32 {v(MSG+i)}, {v(TM+2*i)}, {v(TM+2*i+1)}")
a(f"""
s_add_u32 {s(sTAU)}, {s(sTAU)}, 1
s_cmp_lt_u32 {s(sTAU)}, {s(sN)}
s_cbranch_scc1 L_loop
s_waitcnt lgkmcnt(0)
""")
mfma(AG, MSG, SB, AG)
mfma(AG, MSG + 4, SB + 4, AG)
a(f"""
L_loopdone:
s_cmp_lg_u32 {s(sMODE)}, 0
s_cbranch_scc1 L_slow_next
L_epi:
""")
stamp(9)
a(f"""
s_lshl_b32 {s(sT0)}, {s(sST)}, 13
s_add_u32 {s(sT0)}, {s(sT0)}, {AGG}
v_lshlrev_b32 {v(t)}, 4, {v(vL)}
v_add_u32 {v(t)}, {s(sT0)}, {v(t)}
s_lshl_b32 {s(sT1)}, {s(sCB)}, 11
v_add_u32 {v(t+1)}, {s(sT1)}, {v(t)}
v_and_b32 {v(t+2)}, 31, {v(vL)}
v_lshrrev_b32 {v(t+3)}, 5, {v(vL)}
v_lshlrev_b32 {v(t+4)}, 8, {v(t+2)}
v_lshl_add_u32 {v(t+4)}, {v(t+3)}, 5, {v(t+4)}
v_cmp_gt_u32 vcc, {NS}, {v(t+2)}
v_mov_b32 {v(t+5)}, 0x400000
s_mul_i32 {s(sT2)}, s2, {NPB*256}
v_cndmask_b32 {v(t+4)}, {v(t+5)}, {v(t+4)}, vcc
s_mul_i32 {s(sT3)}, {s(sST)}, {NS*256}
s_add_u32 {s(sT2)}, {s(sT2)}, {s(sT3)}
s_lshl_b32 {s(sT3)}, {s(sCB)}, 6
s_add_u32 {s(sT2)}, {s(sT2)}, {s(sT3)}
""")
for i in range(8):
    a(f"v_pk_mul_f32 {v(AG+2*i,2)}, {v(AG+2*i,2)}, {s(sC2,2)}")
for i in range(8):
    a(f"v_cvt_pk_bf16_f32 {v(MSG+i)}, {v(AG+2*i)}, {v(AG+2*i+1)}")
a(f"""
ds_write_b128 {v(t+1)}, {v(MSG,4)}
ds_write_b128 {v(t+1)}, {v(MSG+4,4)} offset:1024
s_waitcnt vmcnt(0) lgkmcnt(0)
s_barrier
""")
for ks in range(8):
    a(f"ds_read_b128 {v(XA+4*ks,4)}, {v(t)} offset:{ks*1024}")
for ks in range(8):
    a(f"s_waitcnt lgkmcnt({7-ks})")
    mfma(U, WB + 4 * ks, XA + 4 * ks, U)
a(f"""
v_cmp_eq_u32 vcc, 0, v0
s_and_saveexec_b64 {s(sM,2)}, vcc
s_cbranch_execz L_noep
s_add_u32 {s(sEP)}, {s(sEP)}, 1
s_lshl_b32 {s(sT0)}, s2, 2
s_add_u32 {s(sT0)}, {s(sT0)}, {EP_OFF:#x}
v_mov_b32 {v(t+6)}, {s(sEP)}
v_mov_b32 {v(t+7)}, 0
buffer_store_dword {v(t+6)}, {v(t+7)}, {s(rWS,4)}, {s(sT0)} offen
L_noep:
s_mov_b64 exec, -1
s_nop 7
s_nop 3
""")
for i in range(8):
    a(f"v_pk_mul_f32 {v(TM+2*i,2)}, {v(U+2*i,2)}, {s(sC1,2)}")
for i in range(16):
    a(f"v_exp_f32 {v(TM+i)}, {v(TM+i)}")
for i in range(8):
    a(f"v_pk_add_f32 {v(TM+2*i,2)}, {v(TM+2*i,2)}, 1.0 op_sel_hi:[1,0]")
for i in range(16):
    a(f"v_rcp_f32 {v(TM+i)}, {v(TM+i)}")
for i in range(8):
    a(f"v_pk_mul_f32 {v(TM+2*i,2)}, {v(TM+2*i,2)}, {v(U+2*i,2)}")
for i in range(8):
    a(f"v_cvt_pk_bf16_f32 {v(MSG+i)}, {v(TM+2*i)}, {v(TM+2*i+1)}")
a(f"""
buffer_store_dwordx4 {v(MSG,4)}, {v(t+4)}, {s(rOUT,4)}, {s(sT2)} offen
buffer_store_dwordx4 {v(MSG+4,4)}, {v(t+4)}, {s(rOUT,4)}, {s(sT2)} offen offset:16
""")
if STAMP:
    a("s_waitcnt vmcnt(0)")
    stamp(10)
    a(f"""
v_writelane_b32 {v(vSTAMP)}, {s(sSPIN)}, 11
v_writelane_b32 {v(vSTAMP)}, {s(sN)}, 12
s_mov_b32 {s(rWS+2)}, 0x400000
s_lshl_b32 {s(sT0)}, s2, 3
s_add_u32 {s(sT0)}, {s(sT0)}, {s(sW)}
s_lshl_b32 {s(sT0)}, {s(sT0)}, 6
s_add_u32 {s(sT0)}, {s(sT0)}, {ST_OFF:#x}
v_lshlrev_b32 {v(t+7)}, 2, {v(vL)}
s_mov_b64 exec, 0xffff
buffer_store_dword {v(vSTAMP)}, {v(t+7)}, {s(rWS,4)}, {s(sT0)} offen
""")
a("""
L_end:
s_endpgm
""")
a(f"""
L_slow:
s_mov_b32 {s(sMODE)}, 1
s_mov_b32 {s(sBASE)}, 0
s_mov_b32 {s(sHAVE)}, 0
s_mov_b64 {s(sPEND,2)}, 0
s_branch L_slow_round
L_slow_next:
s_cmp_eq_u32 {s(sMODE)}, 2
s_cbranch_scc1 L_epi
s_lshl_b32 {s(sT0)}, {s(sN)}, 6
v_subrev_u32 {v(vT)}, {s(sT0)}, {v(vT)}
v_subrev_u32 {v(vS)}, {s(sT0)}, {v(vS)}
s_lshl_b32 {s(sT0)}, {s(sN)}, 8
v_subrev_u32 {v(vLx)}, {s(sT0)}, {v(vLx)}
v_subrev_u32 {v(vLe)}, {s(sT0)}, {v(vLe)}
s_and_b32 {s(sT0)}, {s(sN)}, {R-1}
s_mul_i32 {s(sT0)}, {s(sT0)}, {SLOT}
v_subrev_u32 {v(vX0)}, {s(sT0)}, {v(vX0)}
v_subrev_u32 {v(vX1)}, {s(sT0)}, {v(vX1)}
v_subrev_u32 {v(vEp)}, {s(sT0)}, {v(vEp)}
L_slow_round:
s_waitcnt vmcnt(0) lgkmcnt(0)
s_barrier
""")
assert R & (R - 1) == 0
init_lists()
a(f"""
L_slow_fill:
s_waitcnt lgkmcnt(0)
s_barrier
s_cmp_lg_u32 {s(sHAVE)}, 0
s_cbranch_scc1 L_slow_place
v_add_u32 {v(vSX+1)}, {s(sBASE)}, v0
v_lshlrev_b32 {v(t)}, 2, {v(vSX+1)}
buffer_load_dword {v(vSD)}, {v(t)}, {s(rDST,4)}, 0 offen
buffer_load_dword {v(vSX)}, {v(t)}, {s(rSRC,4)}, 0 offen
s_mul_i32 {s(sT0)}, s2, {NPB}
s_mov_b32 {s(sT1)}, {E}
s_add_u32 {s(sBASE)}, {s(sBASE)}, 512
s_waitcnt vmcnt(0)
v_subrev_u32 {v(vSD)}, {s(sT0)}, {v(vSD)}
v_cmp_gt_u32 vcc, {NPB}, {v(vSD)}
v_cmp_gt_u32 {s(sPEND,2)}, {s(sT1)}, {v(vSX+1)}
v_add_u32 {v(vSD)}, 1, {v(vSD)}
s_and_b64 {s(sPEND,2)}, {s(sPEND,2)}, vcc
L_slow_place:
s_mov_b64 exec, {s(sPEND,2)}
""")
place_issue(vSD, D + 1, D + 2)
a("s_waitcnt lgkmcnt(0)")
place_finish(vSD, D + 1, D + 2, vSX, None)
a(f"""
s_andn2_b64 {s(sPEND,2)}, {s(sPEND,2)}, exec
s_mov_b64 exec, -1
v_mov_b32 {v(t+6)}, {CNT}
s_waitcnt lgkmcnt(0)
s_barrier
ds_read_b64 {v(t,2)}, {v(t+6)}
s_waitcnt lgkmcnt(0)
v_readfirstlane_b32 {s(sT0)}, {v(t)}
v_readfirstlane_b32 {s(sT1)}, {v(t+1)}
s_max_u32 {s(sN)}, {s(sT0)}, {s(sT1)}
s_cmp_gt_u32 {s(sN)}, {CAP}
s_cselect_b32 {s(sHAVE)}, 1, 0
s_min_u32 {s(sN)}, {s(sN)}, {CAP}
s_cmp_lg_u32 {s(sHAVE)}, 0
s_cbranch_scc1 L_process
s_cmp_lt_u32 {s(sBASE)}, {E}
s_cbranch_scc1 L_slow_fill
s_mov_b32 {s(sMODE)}, 2
s_branch L_process
""")
a(f"""
.section .rodata,"a"
.p2align 6
.amdhsa_kernel {name}
  .amdhsa_next_free_vgpr {a.vmax}
  .amdhsa_next_free_sgpr {max(a.smax, 32)}
  .amdhsa_accum_offset {(a.vmax+3)//4*4}
  .amdhsa_group_segment_fixed_size 0
  .amdhsa_kernarg_size 72
  .amdhsa_user_sgpr_count 2
  .amdhsa_user_sgpr_kernarg_segment_ptr 1
  .amdhsa_system_sgpr_workgroup_id_x 1
  .amdhsa_float_denorm_mode_32 3
  .amdhsa_float_denorm_mode_16_64 3
.end_amdhsa_kernel
""")
open(out_path, "w").write(a.text())
print("vgprs", a.vmax, "sgprs", a.smax, "LDS", INIT_END, "lines", len(a.lines))
```

```python
import sys
from asmlib import *

ARGS = sys.argv[1:]
STAMP = "--stamp" in ARGS
def opt(name, d):
    for x in ARGS:
        if x.startswith(name + "="): return int(x.split("=")[1])
    return d
out_path = [x for x in ARGS if not x.startswith("--")][0]
UNROLL = opt("--unroll", 6)
NT1 = " nt" if opt("--nt1", 1) else ""
NTE = " nt" if opt("--nte", 0) else ""
NTW = " nt" if opt("--ntw", 1) else ""
LATE = opt("--late", 0)

N, E = 10000, 160000
NB, NPB, NS = 250, 40, 20
NPM = 157
NP, EPP = 64, 2500
R = 3
CAP = 448
SLOT = 3072
RING_W = R * SLOT
WBL = 8 * RING_W
S_PAD = WBL + 32768
S_BASE = S_PAD + 64
S_ROW = CAP * 2 + 16
S_ROWS = 52
L_BASE = S_BASE + S_ROWS * S_ROW
L_ST = (CAP + 32 * 4) * 8
CNT = L_BASE + 2 * L_ST + 256
INIT_END = CNT + 16
LDS_BYTES = 163840
assert INIT_END <= LDS_BYTES, INIT_END
W1L, W2L, W3L, HDR = 0, 32768, 65536, 69632
IMG = 0
XOWN, XP = WBL, WBL + 12288
EP_OFF, PF_OFF, P_OFF, ST_OFF = 0x200000, 0x210000, 0x280000, 0x500000
WS_BYTES = 0x500000
NLOG2E, NLN2 = 0xBFB8AA3B, 0xBF317218
HK, HX = 0x9E3779B1, 0x5BD1E995

a = Asm()
a.snext = 4
sP = a.salloc(18, 4)
pX, pE, pSRC, pDST, pWM, pWU, pOUT, pDBG, pWS = [sP + 2 * i for i in range(9)]
rX = a.salloc(4, 4); rPI = a.salloc(4, 4); rEI = a.salloc(4, 4); rSRC = a.salloc(4, 4); rDST = a.salloc(4, 4)
rWM = a.salloc(4, 4); rWU = a.salloc(4, 4); rOUT = a.salloc(4, 4); rWS = a.salloc(4, 4)
sW = a.salloc(); sCB = a.salloc(); sST = a.salloc(); sEP = a.salloc(); sTAG = a.salloc()
sT0 = a.salloc(); sT1 = a.salloc(); sT2 = a.salloc(); sT3 = a.salloc()
sC1 = a.salloc(2, 2); sC2 = a.salloc(2, 2)
sM = a.salloc(2, 2); sM2 = a.salloc(2, 2); sPEND = a.salloc(2, 2); sL7 = a.salloc(2, 2); sPC = a.salloc(2, 2)
sN = a.salloc(); sREM = a.salloc(); sSLOT = a.salloc(); sSTEP = a.salloc()
sMODE = a.salloc(); sBASE = a.salloc(); sSPIN = a.salloc(); sRB = a.salloc(); sREND = a.salloc(); sHAVE = a.salloc()
sSTAMP = a.salloc(2, 2) if STAMP else None
assert a.smax <= 102, a.smax

a.vnext = 1
vL = a.valloc(); vTID16 = a.valloc(); vOFF = a.valloc()
vP0 = a.valloc(); vP1 = a.valloc(); vEp = a.valloc(); vS = a.valloc(); vT = a.valloc(); vLx = a.valloc(); vLe = a.valloc()
bP0 = a.valloc(); bEp = a.valloc(); bS = a.valloc(); bT = a.valloc(); bLx = a.valloc(); bLe = a.valloc()
vEB = a.valloc()
pI0 = a.valloc(2, 2); pI1 = a.valloc(2, 2); pIE = a.valloc(2, 2)
vSX = a.valloc(2, 2); vSD = a.valloc()
vONE = a.valloc(); vBF1 = a.valloc(); vSTAMP = a.valloc()
vXO = a.valloc(2); aW = a.valloc(); aWp = a.valloc(); aWb = a.valloc(); aXo = a.valloc()
t = a.valloc(16, 4)
W3 = a.valloc(4, 4); Q = a.valloc(8, 4); ID = a.valloc(8, 4); AG = a.valloc(16, 4); U = a.valloc(16, 4)
D0 = a.valloc(16, 4); D1 = a.valloc(16, 4)
TM = a.valloc(16, 4); MSG = a.valloc(8, 4); PA = a.valloc(8, 4)
EA = a.valloc(4, 4); TA = a.valloc(8, 4); SB = a.valloc(8, 4)
EV = a.valloc(4, 4)
WF, XF = D0, TM
assert D1 == D0 + 16 and MSG == TM + 16 and PA == MSG + 8
assert a.vmax <= 256, a.vmax

FINE = "--fine" in ARGS
def fstamp(k):
    if FINE: stamp(k, True)
def stamp(k, force=False):
    if FINE and not force and 3 <= k <= 10: return
    if STAMP:
        a(f"{'s_memtime' if '--cyc' in ARGS else 's_memrealtime'} {s(sSTAMP,2)}")
        a("s_waitcnt lgkmcnt(0)")
        a(f"v_writelane_b32 {v(vSTAMP)}, {s(sSTAMP)}, {k}")
def srd(r, p, nrec, stride=0):
    a(f"s_mov_b32 {s(r)}, {s(p)}")
    if stride: a(f"s_or_b32 {s(r+1)}, {s(p+1)}, {stride<<16:#x}")
    else: a(f"s_mov_b32 {s(r+1)}, {s(p+1)}")
    a(f"s_mov_b32 {s(r+2)}, {nrec:#x}")
    a(f"s_mov_b32 {s(r+3)}, 0x20000")
def mfma_s(d, A, B, c):
    cs = "0" if c is None else v(c, 16)
    return f"v_mfma_f32_32x32x16_bf16 {v(d,16)}, {v(A,4)}, {v(B,4)}, {cs}"
def mfma(d, A, B, c): a(mfma_s(d, A, B, c))
def dma_block(rs, n, soff_s):
    for i in range(n):
        a(f"buffer_load_dwordx4 {v(vOFF)}, {s(rs,4)}, {s(soff_s)} offen offset:{i*1024} lds")
def tr_frags(dst, addr, base, step2):
    for ks in range(8):
        for h2 in range(2):
            a(f"ds_read_b64_tr_b16 {v(dst+4*ks+2*h2,2)}, {v(addr)} offset:{base + ks*4096 + h2*step2}")
def row_frags(dst, addr, tmp):
    for ks in range(8):
        if ks == 0:
            a(f"ds_read_b128 {v(dst,4)}, {v(addr)}")
        else:
            a(f"v_xor_b32 {v(tmp)}, {ks*32}, {v(addr)}")
            a(f"ds_read_b128 {v(dst+4*ks,4)}, {v(tmp)}")

name = "standalone__mpnn_edge_mlp__graph_kernel"
hdr = open("standalone__mpnn_edge_mlp__graph.s.ref").read().split("; Override launch")[0]
a.lines.append(hdr.rstrip("\n"))
a.lines.append(f"; @launch grid=({NB},1,1) block=(512,1,1) lds={LDS_BYTES}")
a(f""".amdgcn_target "amdgcn-amd-amdhsa--gfx950"
.text
.globl {name}
.p2align 8
.type {name},@function
{name}:""")
a(f"""
s_getpc_b64 {s(sPC,2)}
L_pc:
s_cmp_ge_u32 s2, {NB}
s_cbranch_scc1 L_end
s_load_dwordx16 {s(sP,16)}, s[0:1], 0
s_load_dwordx2 {s(pWS,2)}, s[0:1], 64
v_lshlrev_b32 {v(t+4)}, 7, v0
v_cmp_gt_u32 vcc, (L_slow-L_pc+127)/128, v0
s_and_saveexec_b64 {s(sM,2)}, vcc
s_cbranch_execz L_nopf
global_load_dword {v(vSD)}, {v(t+4)}, {s(sPC,2)}{NTW}
L_nopf:
s_mov_b64 exec, -1
""")
if STAMP: a(f"v_mov_b32 {v(vSTAMP)}, 0")
stamp(0)
a(f"""
v_and_b32 {v(vL)}, 63, v0
v_lshrrev_b32 {v(t)}, 6, v0
v_lshlrev_b32 {v(vTID16)}, 4, v0
v_readfirstlane_b32 {s(sW)}, {v(t)}
v_lshrrev_b32 {v(t+1)}, 4, {v(vL)}
v_and_b32 {v(t+2)}, 15, {v(vL)}
v_lshlrev_b32 {v(t+3)}, 2, {v(t+1)}
v_xor_b32 {v(t+2)}, {v(t+2)}, {v(t+3)}
v_lshlrev_b32 {v(t+2)}, 4, {v(t+2)}
v_lshl_add_u32 {v(vOFF)}, {v(t+1)}, 8, {v(t+2)}
s_and_b32 {s(sCB)}, {s(sW)}, 3
s_lshr_b32 {s(sST)}, {s(sW)}, 2
s_lshl_b32 {s(sT3)}, s2, 2
s_add_u32 {s(sT3)}, {s(sT3)}, {EP_OFF:#x}
s_lshl_b32 {s(sT0)}, {s(sW)}, 12
s_lshl_b32 {s(sT1)}, {s(sW)}, 11
v_lshrrev_b32 {v(t+2)}, 3, v0
v_and_b32 {v(t+2)}, 8, {v(t+2)}
v_and_b32 {v(t+3)}, 15, {v(vL)}
v_or_b32 {v(t+2)}, {v(t+2)}, {v(t+1)}
v_xor_b32 {v(t+2)}, {v(t+2)}, {v(t+3)}
v_lshlrev_b32 {v(t+2)}, 4, {v(t+2)}
v_lshl_add_u32 {v(vXO)}, {v(t+1)}, 8, {v(t+2)}
v_xor_b32 {v(vXO+1)}, 64, {v(vXO)}
v_lshlrev_b32 {v(t+4)}, 7, {v(vL)}
s_lshr_b32 {s(sT2)}, s2, 3
s_mul_i32 {s(sT2)}, {s(sT2)}, {18*128}
s_waitcnt lgkmcnt(0)
""")
srd(rWM, pWM, 272 * 256); srd(rWU, pWU, 65536)
a(f"""
s_cmp_lg_u32 {s(sW)}, 7
s_cbranch_scc1 L_nopf2
s_mov_b64 exec, 0x3ffff
buffer_load_dword {v(vSX+1)}, {v(t+4)}, {s(rWM,4)}, {s(sT2)} offen{NTW}
buffer_load_dword {v(vSX)}, {v(t+4)}, {s(rWU,4)}, {s(sT2)} offen{NTW}
s_mov_b64 exec, -1
L_nopf2:
""")
srd(rX, pX, N * 256); srd(rWS, pWS, WS_BYTES)
PD, PS = XF, XF + 8
def xrows(soff_s):
    a(f"buffer_load_dwordx4 {v(vXO)}, {s(rX,4)}, {s(soff_s)} offen{NT1} lds")
    a(f"buffer_load_dwordx4 {v(vXO+1)}, {s(rX,4)}, {s(soff_s)} offen offset:1024{NT1} lds")
a(f"""
s_cmp_ge_u32 s2, {NPM}
s_cbranch_scc1 L_notpm1
s_add_u32 m0, {s(sT1)}, {XP}
s_lshl_b32 {s(sT2)}, s2, 14
s_add_u32 {s(sT2)}, {s(sT2)}, {s(sT1)}
""")
xrows(sT2)
a(f"""
s_mov_b32 {s(sT2)}, {EP_OFF:#x}
v_lshlrev_b32 {v(t)}, 4, {v(vL)}
buffer_load_dwordx4 {v(EV,4)}, {v(t)}, {s(rWS,4)}, {s(sT2)} offen
s_branch L_role1
L_notpm1:
s_cmp_ge_u32 s2, {NPM+NP}
s_cbranch_scc1 L_role1
""")
srd(rDST, pDST, E * 4); srd(rSRC, pSRC, E * 4)
a(f"""
s_sub_u32 {s(sT2)}, s2, {NPM}
s_mul_i32 {s(sT2)}, {s(sT2)}, {EPP*4}
v_lshlrev_b32 {v(t)}, 2, v0
v_lshrrev_b32 {v(t+1)}, 3, v0
buffer_load_dwordx4 {v(PD,4)}, {v(vTID16)}, {s(rDST,4)}, {s(sT2)} offen{NT1}
buffer_load_dwordx4 {v(PS,4)}, {v(vTID16)}, {s(rSRC,4)}, {s(sT2)} offen{NT1}
s_add_u32 {s(sT2)}, {s(sT2)}, 8192
v_lshlrev_b32 {v(t+1)}, 2, {v(t+1)}
buffer_load_dword {v(PD+4)}, {v(t)}, {s(rDST,4)}, {s(sT2)} offen{NT1}
buffer_load_dword {v(PS+4)}, {v(t)}, {s(rSRC,4)}, {s(sT2)} offen{NT1}
s_mov_b32 {s(sT2)}, {EP_OFF:#x}
""")
for j in range(4):
    a(f"buffer_load_dword {v(EV+j)}, {v(t+1)}, {s(rWS,4)}, {s(sT2)} offen offset:{j*256}")
a("L_role1:")
fstamp(3)
a(f"s_load_dword {s(sEP)}, {s(pWS,2)}, {s(sT3)}")
a(f"""
s_min_u32 {s(sT3)}, {s(sW)}, 5
s_lshl_b32 {s(sT3)}, {s(sT3)}, 11
s_add_u32 m0, {s(sT3)}, {XOWN}
s_mul_i32 {s(sT2)}, s2, {NPB*256}
s_add_u32 {s(sT2)}, {s(sT2)}, {s(sT1)}
s_cmp_ge_u32 {s(sW)}, 5
s_cselect_b32 {s(sT2)}, 0x400000, {s(sT2)}
""")
xrows(sT2)
fstamp(4)
def group2():
    a(f"""
s_add_u32 {s(sT2)}, {s(sT0)}, {W2L}
s_mov_b32 m0, {s(sT2)}
s_lshl_b32 {s(sT3)}, {s(sCB)}, 10
""")
    dma_block(rWM, 4, sT2)
    a(f"""
s_add_u32 {s(sT3)}, {s(sT3)}, {W3L}
s_mov_b32 m0, {s(sT3)}
s_nop 0
""")
    dma_block(rWM, 1, sT3)
a(f"s_mov_b32 {s(sL7)}, 0x80808080")
a(f"""
s_mov_b32 {s(sL7+1)}, 0x80808080
s_mov_b32 {s(sC1)}, {NLOG2E:#x}
s_mov_b32 {s(sC1+1)}, {NLOG2E:#x}
s_mov_b32 {s(sC2)}, {NLN2:#x}
s_mov_b32 {s(sC2+1)}, {NLN2:#x}
v_mov_b32 {v(vONE)}, 1
v_mov_b32 {v(vBF1)}, 0x3f80
""")
def init_lists():
    z, o, ad = t + 4, t + 8, t + 12
    for i in range(4):
        a(f"v_mov_b32 {v(z+i)}, 0")
        a(f"v_mov_b32 {v(o+i)}, 0x100000")
    a(f"v_add_u32 {v(ad)}, {S_PAD}, {v(vTID16)}")
    sbytes = L_BASE - S_PAD
    full = sbytes // 8192
    for j in range(full):
        a(f"ds_write_b128 {v(ad)}, {v(z,4)} offset:{j*8192}")
    rem = sbytes - full * 8192
    assert rem % 16 == 0
    a(f"v_cmp_gt_u32 vcc, {rem//16}, v0")
    a(f"s_and_saveexec_b64 {s(sM,2)}, vcc")
    a(f"ds_write_b128 {v(ad)}, {v(z,4)} offset:{full*8192}")
    a(f"s_mov_b64 exec, -1")
    lbytes = CNT - L_BASE
    assert 8192 < lbytes <= 16384 and lbytes % 16 == 0
    a(f"ds_write_b128 {v(ad)}, {v(o,4)} offset:{L_BASE - S_PAD}")
    a(f"v_cmp_gt_u32 vcc, {(lbytes-8192)//16}, v0")
    a(f"s_and_saveexec_b64 {s(sM,2)}, vcc")
    a(f"ds_write_b128 {v(ad)}, {v(o,4)} offset:{L_BASE - S_PAD + 8192}")
    a(f"s_mov_b64 exec, -1")
    a(f"v_cmp_eq_u32 vcc, 0, v0")
    a(f"s_and_saveexec_b64 {s(sM,2)}, vcc")
    a(f"ds_write_b128 {v(ad)}, {v(z,4)} offset:{CNT - S_PAD}")
    a(f"s_mov_b64 exec, -1")
a(f"""
s_sub_u32 {s(sT2)}, s2, {NPM}
s_cmp_ge_u32 {s(sT2)}, {NP}
s_cbranch_scc1 L_noimg
v_mov_b32 {v(t)}, 0
v_mov_b32 {v(t+1)}, 0
v_mov_b32 {v(t+2)}, 0
v_mov_b32 {v(t+3)}, 0
v_lshlrev_b32 {v(t+4)}, 2, v0
v_add_u32 {v(t+4)}, {HDR}, {v(t+4)}
""")
for j in range(4):
    a(f"ds_write_b128 {v(vTID16)}, {v(t,4)} offset:{IMG + j*8192}")
a(f"""
ds_write_b32 {v(t+4)}, {v(t)}
L_noimg:
""")
init_lists()
fstamp(5)
vq, vr, vc4, vh, vm = t, t + 1, t + 2, t + 3, t + 4
x1, x2, x3 = t + 5, t + 6, t + 7
a(f"""
v_lshrrev_b32 {v(vq)}, 4, {v(vL)}
v_bfe_u32 {v(vr)}, {v(vL)}, 2, 2
v_and_b32 {v(vc4)}, 3, {v(vL)}
v_lshrrev_b32 {v(vh)}, 5, {v(vL)}
v_and_b32 {v(vm)}, 31, {v(vL)}
v_xor_b32 {v(x1)}, {s(sCB)}, {v(vr)}
v_lshlrev_b32 {v(x1)}, 6, {v(x1)}
v_lshl_add_u32 {v(x1)}, {v(vr)}, 8, {v(x1)}
v_and_b32 {v(x2)}, 1, {v(vq)}
v_lshl_add_u32 {v(aW)}, {v(vh)}, 11, {v(x1)}
v_lshl_add_u32 {v(aW)}, {v(x2)}, 5, {v(aW)}
v_lshl_add_u32 {v(aW)}, {v(vc4)}, 3, {v(aW)}
v_add_u32 {v(aW)}, {W2L}, {v(aW)}
v_and_b32 {v(x3)}, 1, {v(vc4)}
v_lshl_add_u32 {v(x1)}, {v(x3)}, 5, {v(x1)}
v_lshl_add_u32 {v(x1)}, {v(x2)}, 4, {v(x1)}
v_lshrrev_b32 {v(x3)}, 1, {v(vc4)}
v_lshl_add_u32 {v(x1)}, {v(x3)}, 3, {v(x1)}
v_lshl_add_u32 {v(aWp)}, {v(vh)}, 11, {v(x1)}
v_lshl_add_u32 {v(aWb)}, {v(vh)}, 10, {v(x1)}
v_add_u32 {v(aWb)}, {WBL}, {v(aWb)}
""")
a(f"""
s_cmp_ge_u32 s2, {NPM}
s_cbranch_scc1 L_notpm2
""")
aXp, aPw, aPr = t + 8, t + 9, t + 10
a(f"""
s_mov_b32 m0, {s(sT0)}
s_lshl_b32 {s(sT2)}, {s(sST)}, 5
""")
dma_block(rWM, 4, sT0)
a(f"""
v_add_u32 {v(x1)}, {s(sT2)}, {v(vm)}
v_and_b32 {v(x3)}, 15, {v(vm)}
v_xor_b32 {v(x2)}, {v(x3)}, {v(vh)}
v_lshlrev_b32 {v(x1)}, 8, {v(x1)}
v_add_u32 {v(x1)}, {XP}, {v(x1)}
v_lshl_add_u32 {v(aXp)}, {v(x2)}, 4, {v(x1)}
s_lshl_b32 {s(sT2)}, {s(sCB)}, 2
v_lshl_add_u32 {v(x2)}, {v(vh)}, 1, {s(sT2)}
v_xor_b32 {v(x2)}, {v(x2)}, {v(x3)}
v_lshl_add_u32 {v(aPw)}, {v(x2)}, 4, {v(x1)}
s_add_u32 {s(sT3)}, {s(sT1)}, {XP}
v_lshlrev_b32 {v(aPr)}, 4, {v(vL)}
v_add_u32 {v(aPr)}, {s(sT3)}, {v(aPr)}
""")
fstamp(6)
a("s_waitcnt vmcnt(0) lgkmcnt(0)")
fstamp(8)
a("s_barrier")
stamp(1)
tr_frags(WF, aWp, W1L, 1024)
row_frags(XF, aXp, x1)
group2()
a(f"""
s_lshl_b32 {s(sT2)}, s2, 14
s_add_u32 {s(sT2)}, {s(sT2)}, {s(sT1)}
s_add_u32 {s(sT2)}, {s(sT2)}, {P_OFF:#x}
s_waitcnt lgkmcnt(0)
""")
fstamp(9)
for ks in range(8):
    mfma(AG, WF + 4 * ks, XF + 4 * ks, None if ks == 0 else AG)
a(f"""
s_barrier
v_xor_b32 {v(x1)}, 16, {v(aPw)}
s_nop 7
s_nop 2
""")
for i in range(8):
    a(f"v_pk_mul_f32 {v(AG+2*i,2)}, {v(AG+2*i,2)}, {s(sC1,2)}")
for i in range(8):
    a(f"v_cvt_pk_bf16_f32 {v(WF+i)}, {v(AG+2*i)}, {v(AG+2*i+1)}")
a(f"""
ds_write_b128 {v(aPw)}, {v(WF,4)}
ds_write_b128 {v(x1)}, {v(WF+4,4)}
s_mov_b32 {s(sT3)}, {HK:#x}
s_waitcnt lgkmcnt(0)
""")
fstamp(10)
a(f"""
s_barrier
ds_read_b128 {v(WF,4)}, {v(aPr)}
ds_read_b128 {v(WF+4,4)}, {v(aPr)} offset:1024
s_waitcnt lgkmcnt(1)
buffer_store_dwordx4 {v(WF,4)}, {v(vXO)}, {s(rWS,4)}, {s(sT2)} offen sc1
s_waitcnt lgkmcnt(0)
buffer_store_dwordx4 {v(WF+4,4)}, {v(vXO+1)}, {s(rWS,4)}, {s(sT2)} offen offset:1024 sc1
""")
stamp(2)
a("s_branch L_role2")
a(f"""
L_notpm2:
s_cmp_ge_u32 s2, {NPM+NP}
s_cbranch_scc1 L_role2a
s_mov_b32 {s(sT2)}, 52429
v_lshlrev_b32 {v(t+5)}, 8, v0
v_lshlrev_b32 {v(t+6)}, 6, v0
v_add_u32 {v(t+6)}, {2048*64}, {v(t+6)}
v_cmp_gt_u32 vcc, {EPP-2048}, v0
s_mov_b64 {s(sM,2)}, vcc
s_waitcnt lgkmcnt(0)
s_barrier
s_waitcnt vmcnt(6)
""")
stamp(1)
PB, PR, PO = WF, WF + 6, WF + 16
for j in range(5):
    a(f"""
v_mul_u32_u24 {v(PB+j)}, {s(sT2)}, {v(PD+j)}
v_lshlrev_b32 {v(t+8)}, 18, {v(PS+j)}
v_lshrrev_b32 {v(PB+j)}, 21, {v(PB+j)}
v_add3_u32 {v(t+7)}, {v(PD+j)}, {v(t+5 if j<4 else t+6)}, {v(t+8)}
v_mad_i32_i24 {v(t+7)}, {v(PB+j)}, {v(SB)}, {v(t+7)}
""".replace(f"v_mad_i32_i24 {v(t+7)}, {v(PB+j)}, {v(SB)}, {v(t+7)}",
            f"v_mul_u32_u24 {v(t+8)}, {NPB}, {v(PB+j)}\nv_sub_u32 {v(t+7)}, {v(t+7)}, {v(t+8)}"))
    a(f"v_add_u32 {v(PR+2*j+1)}, {1 + (64*j if j < 4 else 0)}, {v(t+7)}")
    if j == 4: a(f"s_mov_b64 exec, {s(sM,2)}")
    a(f"""
v_mov_b32 {v(PR+2*j)}, 1
v_lshlrev_b32 {v(t+9+j)}, 3, {v(PB+j)}
v_add_u32 {v(t+9+j)}, {HDR}, {v(t+9+j)}
ds_add_rtn_u64 {v(PO+2*j,2)}, {v(t+9+j)}, {v(PR+2*j,2)}
""")
a("s_mov_b64 exec, -1")
for j in range(5):
    lab2 = a.label("L_ovfr")
    if j == 4: a(f"s_mov_b64 exec, {s(sM,2)}")
    if j == 0: a("s_waitcnt lgkmcnt(4)")
    if j == 1: a("s_waitcnt lgkmcnt(0)")
    sl = PO + 2 * j
    a(f"""
v_cmp_lt_u32 vcc, 22, {v(sl)}
v_lshlrev_b32 {v(PB+j)}, 7, {v(PB+j)}
s_nop 0
v_addc_co_u32 {v(t+7)}, vcc, 0, {v(sl)}, vcc
v_and_b32 {v(t+8)}, 7, {v(t+7)}
v_lshl_add_u32 {v(PB+j)}, {v(t+8)}, 4, {v(PB+j)}
v_lshrrev_b32 {v(t+7)}, 3, {v(t+7)}
v_lshl_add_u32 {v(PB+j)}, {v(t+7)}, 2, {v(PB+j)}
v_cmp_gt_u32 vcc, 30, {v(sl)}
s_and_saveexec_b64 {s(sM2,2)}, vcc
ds_write_b32 {v(PB+j)}, {v(PR+2*j+1)} offset:{IMG}
s_andn2_b64 exec, {s(sM2,2)}, exec
s_cbranch_execz {lab2}
ds_sub_u32 {v(t+9+j)}, {v(PR+2*j+1)} offset:4
{lab2}:
s_mov_b64 exec, -1
""")
a(f"""
v_lshrrev_b32 {v(t+8)}, 3, v0
v_lshlrev_b32 {v(t+9)}, 13, {v(t+8)}
v_lshlrev_b32 {v(t+8)}, 3, {v(t+8)}
v_add_u32 {v(t+8)}, {HDR}, {v(t+8)}
v_and_b32 {v(t+10)}, 7, v0
v_lshl_add_u32 {v(t+9)}, {v(t+10)}, 4, {v(t+9)}
s_sub_u32 {s(sT2)}, s2, {NPM}
s_lshl_b32 {s(sT2)}, {s(sT2)}, 7
s_mov_b32 {s(sT3)}, {HK:#x}
s_waitcnt vmcnt(2)
""")
for j in range(4):
    a(f"v_mul_lo_u32 {v(EV+j)}, {v(EV+j)}, {s(sT3)}")
    a(f"v_xor_b32 {v(EV+j)}, {HX:#x}, {v(EV+j)}")
a(f"""
s_mov_b32 {s(rWS+2)}, {NB*8192:#x}
s_waitcnt lgkmcnt(0)
s_barrier
""")
G, H = WF, WF + 16
for j in range(4):
    a(f"ds_read_b128 {v(G+4*j,4)}, {v(vTID16)} offset:{IMG + j*8192}")
    a(f"ds_read_b64 {v(H+2*j,2)}, {v(t+8)} offset:{j*512}")
for j in range(4):
    a(f"""
s_waitcnt lgkmcnt({6-2*j})
v_add3_u32 {v(H+2*j+1)}, {v(H+2*j+1)}, {v(H+2*j)}, {v(EV+j)}
v_cndmask_b32 {v(G+4*j+2)}, {v(G+4*j+2)}, {v(H+2*j)}, {s(sL7,2)}
v_cndmask_b32 {v(G+4*j+3)}, {v(G+4*j+3)}, {v(H+2*j+1)}, {s(sL7,2)}
buffer_store_dwordx4 {v(G+4*j,4)}, {v(t+9)}, {s(rWS,4)}, {s(sT2)} offen sc1
s_add_u32 {s(sT2)}, {s(sT2)}, {64*8192}
""")
a(f"s_mov_b32 {s(rWS+2)}, {WS_BYTES:#x}")
stamp(2)
a("""
s_barrier
L_role2a:
""")
group2()
a("L_role2:")
a(f"""
s_mov_b32 m0, {s(sT0)}
s_nop 0
""")
dma_block(rWU, 4, sT0)
srd(rEI, pE, E, 32); srd(rOUT, pOUT, N * 256); srd(rDST, pDST, E * 4); srd(rSRC, pSRC, E * 4)
a(f"""
s_add_u32 {s(rPI)}, {s(pWS)}, {P_OFF:#x}
s_addc_u32 {s(rPI+1)}, {s(pWS+1)}, 0
s_or_b32 {s(rPI+1)}, {s(rPI+1)}, {256<<16:#x}
s_mov_b32 {s(rPI+2)}, {N}
s_mov_b32 {s(rPI+3)}, 0x20000
v_lshrrev_b32 {v(vq)}, 4, {v(vL)}
v_bfe_u32 {v(vr)}, {v(vL)}, 2, 2
v_and_b32 {v(vc4)}, 3, {v(vL)}
v_lshrrev_b32 {v(vh)}, 5, {v(vL)}
v_and_b32 {v(vm)}, 31, {v(vL)}
s_mul_i32 {s(sT2)}, {s(sST)}, {NS}
v_add_u32 {v(x1)}, {s(sT2)}, {v(vm)}
v_cmp_gt_u32 vcc, {NS}, {v(vm)}
v_mov_b32 {v(x2)}, {NPB}
s_mov_b32 {s(sT3)}, {S_ROW}
v_cndmask_b32 {v(x2)}, {v(x2)}, {v(x1)}, vcc
v_and_b32 {v(x3)}, 15, {v(x2)}
v_xor_b32 {v(x3)}, {v(x3)}, {v(vh)}
v_lshlrev_b32 {v(x3)}, 4, {v(x3)}
v_lshl_add_u32 {v(aXo)}, {v(x2)}, 8, {v(x3)}
v_add_u32 {v(aXo)}, {XOWN}, {v(aXo)}
v_mul_lo_u32 {v(bS)}, {v(x1)}, {s(sT3)}
v_lshl_add_u32 {v(bS)}, {v(vh)}, 4, {v(bS)}
v_add_u32 {v(bS)}, {S_BASE-64}, {v(bS)}
v_lshl_add_u32 {v(x1)}, {v(vh)}, 2, {v(vr)}
v_add_u32 {v(x1)}, {s(sT2)}, {v(x1)}
v_mul_lo_u32 {v(bT)}, {v(x1)}, {s(sT3)}
v_and_b32 {v(x2)}, 1, {v(vq)}
v_lshl_add_u32 {v(bT)}, {v(x2)}, 5, {v(bT)}
v_and_b32 {v(x2)}, 1, {v(vc4)}
v_lshl_add_u32 {v(bT)}, {v(x2)}, 4, {v(bT)}
v_lshrrev_b32 {v(x2)}, 1, {v(vc4)}
v_lshl_add_u32 {v(bT)}, {v(x2)}, 3, {v(bT)}
v_add_u32 {v(bT)}, {S_BASE}, {v(bT)}
s_mul_i32 {s(sRB)}, {s(sW)}, {RING_W}
s_add_u32 {s(sREND)}, {s(sRB)}, {RING_W}
v_xor_b32 {v(x1)}, {v(vr)}, {v(vh)}
v_lshlrev_b32 {v(x1)}, 4, {v(x1)}
v_lshl_add_u32 {v(bP0)}, {v(vm)}, 6, {v(x1)}
v_add_u32 {v(bP0)}, {s(sRB)}, {v(bP0)}
v_bfe_u32 {v(x1)}, {v(vm)}, 3, 1
v_xor_b32 {v(x1)}, {v(x1)}, {v(vh)}
v_lshlrev_b32 {v(x1)}, 4, {v(x1)}
v_lshl_add_u32 {v(bEp)}, {v(vm)}, 5, {v(x1)}
v_add_u32 {v(bEp)}, {s(sRB)}, {v(bEp)}
s_mul_i32 {s(sT2)}, {s(sST)}, {L_ST}
s_add_u32 {s(sT2)}, {s(sT2)}, {L_BASE}
""")
a(f"""
v_lshlrev_b32 {v(x1)}, 3, {v(vr)}
v_lshl_add_u32 {v(x1)}, {v(vh)}, 5, {v(x1)}
v_and_b32 {v(x2)}, 1, {v(vq)}
v_lshl_add_u32 {v(x1)}, {v(x2)}, 6, {v(x1)}
v_add_u32 {v(bLx)}, {s(sT2)}, {v(x1)}
v_bfe_u32 {v(x1)}, {v(vL)}, 1, 2
v_lshlrev_b32 {v(x1)}, 3, {v(x1)}
v_lshl_add_u32 {v(x1)}, {v(x2)}, 5, {v(x1)}
v_bfe_u32 {v(x3)}, {v(vL)}, 3, 1
v_lshl_add_u32 {v(x1)}, {v(x3)}, 6, {v(x1)}
v_lshl_add_u32 {v(x1)}, {v(vh)}, 7, {v(x1)}
v_add_u32 {v(bLe)}, {s(sT2)}, {v(x1)}
v_xor_b32 {v(x1)}, {v(vc4)}, {v(vq)}
s_lshl_b32 {s(sT2)}, {s(sCB)}, 6
v_lshl_add_u32 {v(pI0+1)}, {v(x1)}, 4, {s(sT2)}
v_mov_b32 {v(pI1+1)}, {v(pI0+1)}
v_xor_b32 {v(x1)}, {v(vL)}, {v(x2)}
v_and_b32 {v(x1)}, 1, {v(x1)}
v_lshlrev_b32 {v(pIE+1)}, 4, {v(x1)}
v_lshrrev_b32 {v(x1)}, 3, v0
v_mul_u32_u24 {v(vEB)}, {EPP}, {v(x1)}
""")
a(f"""
v_and_b32 {v(x1)}, 1, {v(vm)}
v_lshlrev_b32 {v(x1)}, 4, {v(x1)}
v_lshlrev_b32 {v(x1)}, {v(x1)}, {v(vBF1)}
v_lshrrev_b32 {v(x2)}, 1, {v(vm)}
v_lshlrev_b32 {v(x3)}, 2, {v(vh)}
v_sub_u32 {v(x2)}, {v(x2)}, {v(x3)}
""")
cm = [sM, sM2, sPEND]
for k in range(8):
    aa, j = k // 4, k % 4
    a(f"v_cmp_eq_u32 {s(cm[k%3],2)}, {8*aa+j}, {v(x2)}")
    if k >= 2: a(f"v_cndmask_b32 {v(ID+k-2)}, 0, {v(x1)}, {s(cm[(k-2)%3],2)}")
a(f"v_cndmask_b32 {v(ID+6)}, 0, {v(x1)}, {s(cm[0],2)}")
a("s_nop 0")
a(f"v_cndmask_b32 {v(ID+7)}, 0, {v(x1)}, {s(cm[1],2)}")
a(f"s_mov_b32 {s(sT3)}, {HK:#x}")
for j in range(4):
    a(f"v_mul_lo_u32 {v(EV+j)}, {v(EV+j)}, {s(sT3)}")
    a(f"v_xor_b32 {v(EV+j)}, {HX:#x}, {v(EV+j)}")
a(f"""
s_waitcnt vmcnt(4) lgkmcnt(0)
s_barrier
s_cmp_ge_u32 s2, {NPM}
s_cbranch_scc1 L_noflagst
s_cmp_lg_u32 {s(sW)}, 7
s_cbranch_scc1 L_noflagst
s_lshl_b32 {s(sT2)}, s2, 10
s_add_u32 {s(sT2)}, {s(sT2)}, {PF_OFF:#x}
v_lshlrev_b32 {v(x1)}, 4, {v(vL)}
buffer_store_dwordx4 {v(EV,4)}, {v(x1)}, {s(rWS,4)}, {s(sT2)} offen sc1
s_waitcnt vmcnt(1)
s_branch L_flagdone
L_noflagst:
s_nop 0
L_flagdone:
""")
stamp(3)
tr_frags(WF, aW, 0, 1024)
row_frags(XF, aXo, x1)
for h2 in range(2):
    a(f"ds_read_b64_tr_b16 {v(W3+2*h2,2)}, {v(aW)} offset:{W3L - W2L + h2*1024}")
a("s_waitcnt lgkmcnt(0)")
for ks in range(8):
    mfma(AG, XF + 4 * ks, WF + 4 * ks, None if ks == 0 else AG)
for i in range(W3, W3 + 4):
    tt = t + 8 + 2 * (i % 4)
    a(f"""
v_lshlrev_b32 {v(tt)}, 16, {v(i)}
v_and_b32 {v(tt+1)}, 0xffff0000, {v(i)}
v_mul_f32 {v(tt)}, {s(sC1)}, {v(tt)}
v_mul_f32 {v(tt+1)}, {s(sC1)}, {v(tt+1)}
v_cvt_pk_bf16_f32 {v(i)}, {v(tt)}, {v(tt+1)}
""")
a(f"""
s_cmp_lg_u32 {s(sW)}, 7
s_cbranch_scc1 L_wb1
s_cmp_lt_u32 s2, {NPM}
s_cbranch_scc1 L_wb2
L_wb1:
s_waitcnt vmcnt(0)
L_wb2:
s_barrier
""")
stamp(4)
tr_frags(WF, aWp, W1L, 1024)
a(f"""
s_add_u32 m0, {s(sT0)}, {WBL}
s_add_u32 {s(sT2)}, {s(sT0)}, 32768
""")
dma_block(rWU, 4, sT2)
for i in range(8):
    a(f"v_pk_mul_f32 {v(AG+2*i,2)}, {v(AG+2*i,2)}, {s(sC1,2)}")
for i in range(8):
    a(f"v_cvt_pk_bf16_f32 {v(Q+i)}, {v(AG+2*i)}, {v(AG+2*i+1)}")
a(f"""
s_mul_i32 {s(sTAG)}, {s(sEP)}, {HK:#x}
s_xor_b32 {s(sTAG)}, {s(sTAG)}, {HX:#x}
s_add_u32 {s(sT2)}, {s(sTAG)}, 1
v_mov_b32 {v(t+4)}, 0
v_mov_b32 {v(t+5)}, {s(sT2)}
v_cndmask_b32 {v(t+5)}, {v(t+4)}, {v(t+5)}, {s(sL7,2)}
v_cndmask_b32 {v(t+4)}, 0, -1, {s(sL7,2)}
s_lshl_b32 {s(sT1)}, s2, 13
s_mov_b32 {s(sSPIN)}, 0
s_mov_b32 {s(sMODE)}, 0
""")
C = t
a(f"buffer_load_dwordx4 {v(C,4)}, {v(vTID16)}, {s(rWS,4)}, {s(sT1)} offen sc1")
a("s_waitcnt lgkmcnt(0)")
for ks in range(8):
    mfma(U, WF + 4 * ks, XF + 4 * ks, None if ks == 0 else U)
for i in range(16):
    a(f"v_mov_b32 {v(AG+i)}, 0")
stamp(5)
a(f"""
L_poll:
s_waitcnt vmcnt(0)
v_xor_b32 {v(t+6)}, {v(C+3)}, {v(t+4)}
v_add3_u32 {v(t+7)}, {v(C)}, {v(C+1)}, {v(C+2)}
v_add3_u32 {v(t+6)}, {v(t+6)}, {v(t+7)}, {v(t+5)}
s_nop 1
v_add_u32_dpp {v(t+6)}, {v(t+6)}, {v(t+6)} quad_perm:[1,0,3,2] row_mask:0xf bank_mask:0xf
s_nop 1
v_add_u32_dpp {v(t+6)}, {v(t+6)}, {v(t+6)} quad_perm:[2,3,0,1] row_mask:0xf bank_mask:0xf
s_nop 1
v_add_u32_dpp {v(t+6)}, {v(t+6)}, {v(t+6)} row_half_mirror row_mask:0xf bank_mask:0xf
s_add_u32 {s(sSPIN)}, {s(sSPIN)}, 1
v_cmp_ne_u32 vcc, 0, {v(t+6)}
s_cbranch_vccz L_got
s_cmp_lt_u32 {s(sSPIN)}, 0x8000
s_cbranch_scc0 L_end
s_mov_b64 exec, vcc
buffer_load_dwordx4 {v(C,4)}, {v(vTID16)}, {s(rWS,4)}, {s(sT1)} offen sc1
s_mov_b64 exec, -1
s_branch L_poll
L_got:
""")
stamp(6)
vF, vFA = t + 8, t + 9
a(f"""
s_lshl_b32 {s(sT1)}, s2, 2
s_add_u32 {s(sT1)}, {s(sT1)}, {PF_OFF:#x}
v_lshlrev_b32 {v(vFA)}, 10, v0
v_mov_b32 {v(vF)}, {s(sTAG)}
v_cmp_gt_u32 vcc, {NPM}, v0
s_and_saveexec_b64 {s(sM,2)}, vcc
s_cbranch_execz L_nofl1
buffer_load_dword {v(vF)}, {v(vFA)}, {s(rWS,4)}, {s(sT1)} offen sc1
L_nofl1:
s_mov_b64 exec, -1
v_cmp_lt_u32 vcc, 30, {v(C+2)}
s_and_b64 vcc, vcc, {s(sL7,2)}
v_cndmask_b32 {v(C+2)}, {v(C+2)}, 0, {s(sL7,2)}
v_cndmask_b32 {v(C+3)}, {v(C+3)}, 0, {s(sL7,2)}
s_cbranch_vccz L_noflag
v_mov_b32 {v(t+6)}, {CNT+8}
ds_write_b32 {v(t+6)}, {v(vONE)}
L_noflag:
""")
def place_issue(dl1, pos, ca):
    a(f"""
v_cmp_lt_u32 vcc, {NS}, {v(dl1)}
v_mov_b32 {v(ca)}, {CNT}
s_nop 0
v_cndmask_b32 {v(pos)}, 0, {v(vONE)}, vcc
v_lshl_add_u32 {v(ca)}, {v(pos)}, 2, {v(ca)}
v_mul_u32_u24 {v(ca+1)}, {L_ST}, {v(pos)}
ds_add_rtn_u32 {v(pos)}, {v(ca)}, {v(vONE)}
""")
def place_finish(dl1, pos, ca, pair):
    a(f"""
v_cmp_gt_u32 vcc, {CAP}, {v(pos)}
s_and_b64 exec, exec, vcc
v_lshl_add_u32 {v(ca+1)}, {v(pos)}, 3, {v(ca+1)}
v_add_u32 {v(ca+1)}, {L_BASE}, {v(ca+1)}
v_mul_u32_u24 {v(ca)}, {S_ROW}, {v(dl1)}
v_lshl_add_u32 {v(ca)}, {v(pos)}, 1, {v(ca)}
v_add_u32 {v(ca)}, {S_BASE - S_ROW}, {v(ca)}
ds_write_b64 {v(ca+1)}, {v(pair,2)}
ds_write_b16 {v(ca)}, {v(vBF1)}
""")
for jj in range(2):
    skip = a.label("L_pl")
    if jj == 1:
        a(f"""
v_or_b32 {v(t+6)}, {v(C+2)}, {v(C+3)}
v_cmp_ne_u32 vcc, 0, {v(t+6)}
s_cbranch_vccz {skip}
""")
    regs = []
    for k in range(2):
        j = 2 * jj + k
        b = D0 + 8 * k
        dl1, pos, ca, pair = b, b + 1, b + 2, b + 4
        msk = [sM, sM2][k]
        regs.append((dl1, pos, ca, pair, msk))
        a(f"""
v_cmp_ne_u32 vcc, 0, {v(C+j)}
s_mov_b64 {s(msk,2)}, vcc
s_mov_b64 exec, vcc
v_and_b32 {v(dl1)}, 63, {v(C+j)}
""")
        place_issue(dl1, pos, ca)
        a(f"""
v_lshrrev_b32 {v(pair)}, 18, {v(C+j)}
v_bfe_u32 {v(pair+1)}, {v(C+j)}, 6, 12
v_add_u32 {v(pair+1)}, {v(pair+1)}, {v(vEB)}
s_mov_b64 exec, -1
""")
    a("s_waitcnt lgkmcnt(0)")
    for (dl1, pos, ca, pair, msk) in regs:
        a(f"s_mov_b64 exec, {s(msk,2)}")
        place_finish(dl1, pos, ca, pair)
    a("s_mov_b64 exec, -1")
    if jj == 1: a(f"{skip}:")
stamp(7)
a(f"""
L_fpoll:
s_waitcnt vmcnt(0)
v_cmp_ne_u32 vcc, {s(sTAG)}, {v(vF)}
s_cbranch_vccz L_fgot
s_add_u32 {s(sSPIN)}, {s(sSPIN)}, 0x100
s_cmp_lt_u32 {s(sSPIN)}, 0x800000
s_cbranch_scc0 L_end
s_mov_b64 exec, vcc
buffer_load_dword {v(vF)}, {v(vFA)}, {s(rWS,4)}, {s(sT1)} offen sc1
s_mov_b64 exec, -1
s_branch L_fpoll
L_fgot:
v_mov_b32 {v(t+6)}, {CNT}
s_waitcnt lgkmcnt(0)
s_barrier
ds_read_b128 {v(t,4)}, {v(t+6)}
s_waitcnt lgkmcnt(0)
v_readfirstlane_b32 {s(sT0)}, {v(t)}
v_readfirstlane_b32 {s(sT1)}, {v(t+1)}
v_readfirstlane_b32 {s(sT2)}, {v(t+2)}
s_max_u32 {s(sT3)}, {s(sT0)}, {s(sT1)}
s_cmp_gt_u32 {s(sT3)}, {CAP}
s_cbranch_scc1 L_slow
s_cmp_lg_u32 {s(sT2)}, 0
s_cbranch_scc1 L_slow
s_cmp_eq_u32 {s(sST)}, 0
s_cselect_b32 {s(sN)}, {s(sT0)}, {s(sT1)}
L_process:
s_add_u32 {s(sN)}, {s(sN)}, 31
s_lshr_b32 {s(sN)}, {s(sN)}, 5
s_cmp_eq_u32 {s(sN)}, 0
s_cbranch_scc1 L_loopdone
""")
stamp(8)
IMMRING = (UNROLL % R == 0)
def list_reads(lx, le, off):
    a(f"ds_read_b32 {v(pI0)}, {v(lx)} offset:{off}")
    a(f"ds_read_b32 {v(pI1)}, {v(lx)} offset:{off+128}")
    a(f"ds_read_b32 {v(pIE)}, {v(le)} offset:{off+4}")
def dma_tile(slot):
    if slot is not None:
        a(f"""
s_add_u32 m0, {s(sRB)}, {slot*SLOT}
s_nop 0
buffer_load_dwordx4 {v(pI0,2)}, {s(rPI,4)}, 0 idxen offen lds
s_add_u32 m0, {s(sRB)}, {slot*SLOT+1024}
s_nop 0
buffer_load_dwordx4 {v(pI1,2)}, {s(rPI,4)}, 0 idxen offen lds
s_add_u32 m0, {s(sRB)}, {slot*SLOT+2048}
s_nop 0
buffer_load_dwordx4 {v(pIE,2)}, {s(rEI,4)}, 0 idxen offen{NTE} lds
""")
    else:
        a(f"""
s_mov_b32 m0, {s(sSLOT)}
s_add_u32 {s(sSLOT)}, {s(sSLOT)}, {SLOT}
buffer_load_dwordx4 {v(pI0,2)}, {s(rPI,4)}, 0 idxen offen lds
s_add_u32 m0, m0, 1024
s_cmp_eq_u32 {s(sSLOT)}, {s(sREND)}
buffer_load_dwordx4 {v(pI1,2)}, {s(rPI,4)}, 0 idxen offen lds
s_cselect_b32 {s(sSLOT)}, {s(sRB)}, {s(sSLOT)}
s_add_u32 m0, m0, 1024
s_nop 0
buffer_load_dwordx4 {v(pIE,2)}, {s(rEI,4)}, 0 idxen offen{NTE} lds
""")
def frag_reads(ringoff, coloff):
    a(f"ds_read_b128 {v(EA,4)}, {v(vEp)} offset:{ringoff+2048}")
    for u in range(2):
        for h2 in range(2):
            a(f"ds_read_b64_tr_b16 {v(TA+4*u+2*h2,2)}, {v(vT)} offset:{(16*u+8*h2)*S_ROW + coloff}")
    a(f"ds_read_b128 {v(PA,4)}, {v(vP0)} offset:{ringoff}")
    a(f"ds_read_b128 {v(PA+4,4)}, {v(vP1)} offset:{ringoff}")
def g1(d):
    return [mfma_s(d, EA, W3, None), mfma_s(d, TA, Q, d), mfma_s(d, TA + 4, Q + 4, d), mfma_s(d, PA, ID, d), mfma_s(d, PA + 4, ID + 4, d)]
seg = [mfma_s(AG, MSG, SB, AG), mfma_s(AG, MSG + 4, SB + 4, AG)]
for k in range(R):
    list_reads(bLx, bLe, k * 256)
    a("s_waitcnt lgkmcnt(0)")
    dma_tile(k)
a(f"""
v_mov_b32 {v(vP0)}, {v(bP0)}
v_xor_b32 {v(vP1)}, 32, {v(bP0)}
v_mov_b32 {v(vEp)}, {v(bEp)}
v_mov_b32 {v(vS)}, {v(bS)}
v_mov_b32 {v(vT)}, {v(bT)}
v_mov_b32 {v(vLx)}, {v(bLx)}
v_mov_b32 {v(vLe)}, {v(bLe)}
""")
for i in range(8):
    a(f"v_mov_b32 {v(MSG+i)}, 0")
list_reads(vLx, vLe, R * 256)
a(f"""
s_mov_b32 {s(sREM)}, {s(sN)}
s_mov_b32 {s(sSTEP)}, 1
s_mov_b32 {s(sSLOT)}, {s(sRB)}
s_waitcnt vmcnt({3*(R-1)})
""")
frag_reads(0, 0)
a("s_waitcnt lgkmcnt(0)")
for m in g1(D0): a(m)
if LATE:
    dma_tile(0 if IMMRING else None)
stamp(9)
a(".p2align 6")
a("L_loop:")
for u in range(UNROLL):
    cur, nxt = (D0, D1) if u % 2 == 0 else (D1, D0)
    if not IMMRING:
        a(f"""
s_cmp_eq_u32 {s(sSTEP)}, {R}
s_mov_b32 {s(sT1)}, {SLOT}
s_cselect_b32 {s(sT1)}, {-(R-1)*SLOT & 0xffffffff:#x}, {s(sT1)}
s_cselect_b32 {s(sSTEP)}, 0, {s(sSTEP)}
s_add_u32 {s(sSTEP)}, {s(sSTEP)}, 1
v_add_u32 {v(vP0)}, {s(sT1)}, {v(vP0)}
v_add_u32 {v(vP1)}, {s(sT1)}, {v(vP1)}
v_add_u32 {v(vEp)}, {s(sT1)}, {v(vEp)}
""")
    ro = ((u + 1) % R) * SLOT if IMMRING else 0
    a(f"ds_read_b128 {v(SB,4)}, {v(vS)} offset:{u*64}")
    a(f"ds_read_b128 {v(SB+4,4)}, {v(vS)} offset:{u*64+32}")
    if LATE:
        list_reads(vLx, vLe, (u + 1 + R) * 256)
        a(f"s_waitcnt vmcnt({3*(R-1)})")
        frag_reads(ro, (u + 1) * 64)
        a("s_waitcnt lgkmcnt(0)")
        dma_tile((u + 1) % R if IMMRING else None)
    else:
        a(f"s_waitcnt vmcnt({3*(R-2)})")
        frag_reads(ro, (u + 1) * 64)
        dma_tile(u % R if IMMRING else None)
        list_reads(vLx, vLe, (u + 1 + R) * 256)
        a("s_waitcnt lgkmcnt(0)")
    if u == UNROLL - 1:
        a(f"""
v_add_u32 {v(vT)}, {64*UNROLL}, {v(vT)}
v_add_u32 {v(vS)}, {64*UNROLL}, {v(vS)}
v_add_u32 {v(vLx)}, {256*UNROLL}, {v(vLx)}
v_add_u32 {v(vLe)}, {256*UNROLL}, {v(vLe)}
""")
    a("s_setprio 0")
    Eb = [f"v_exp_f32 {v(TM+i)}, {v(cur+i)}" for i in range(16)]
    Ab = [f"v_pk_add_f32 {v(TM+2*i,2)}, {v(TM+2*i,2)}, 1.0 op_sel_hi:[1,0]" for i in range(8)]
    Rb = [f"v_rcp_f32 {v(TM+i)}, {v(TM+i)}" for i in range(16)]
    Mb = [f"v_pk_mul_f32 {v(TM+2*i,2)}, {v(TM+2*i,2)}, {v(cur+2*i,2)}" for i in range(8)]
    Cb = [f"v_cvt_pk_bf16_f32 {v(MSG+i)}, {v(TM+2*i)}, {v(TM+2*i+1)}" for i in range(8)]
    ms = seg + g1(nxt)
    posE, posR = [2, 5, 8, 11], [0, 3, 6]
    k = 0
    for i, x in enumerate(Eb):
        if i == 2: a("s_setprio 1")
        if i in posE: a(ms[k]); k += 1
        a(x)
    for x in Ab: a(x)
    for i, x in enumerate(Rb):
        if i in posR: a(ms[k]); k += 1
        a(x)
    assert k == 7
    for x in Mb + Cb: a(x)
    a("s_setprio 2")
    a(f"s_sub_u32 {s(sREM)}, {s(sREM)}, 1")
    a(f"s_cmp_eq_u32 {s(sREM)}, 0")
    if u < UNROLL - 1:
        a("s_cbranch_scc1 L_exit")
    else:
        a("s_cbranch_scc0 L_loop")
a(f"""
L_exit:
s_lshl_b32 {s(sT0)}, {s(sN)}, 6
v_add_u32 {v(vS)}, {s(sT0)}, {v(bS)}
ds_read_b128 {v(SB,4)}, {v(vS)}
ds_read_b128 {v(SB+4,4)}, {v(vS)} offset:32
s_waitcnt lgkmcnt(0)
""")
for m in seg: a(m)
a(f"""
L_loopdone:
s_cmp_lg_u32 {s(sMODE)}, 0
s_cbranch_scc1 L_slow_next
L_epi:
""")
stamp(10)
WBF, AF = D0, TM
tr_frags(WBF, aWb, 0, 2048)
a(f"""
v_lshlrev_b32 {v(t)}, 4, {v(vL)}
v_add_u32 {v(t+1)}, {s(sRB)}, {v(t)}
s_mul_i32 {s(sT0)}, {s(sST)}, {4*RING_W}
v_add_u32 {v(t)}, {s(sT0)}, {v(t)}
v_and_b32 {v(t+2)}, 31, {v(vL)}
v_lshrrev_b32 {v(t+3)}, 5, {v(vL)}
v_lshlrev_b32 {v(t+4)}, 8, {v(t+2)}
v_lshl_add_u32 {v(t+4)}, {v(t+3)}, 5, {v(t+4)}
v_cmp_gt_u32 vcc, {NS}, {v(t+2)}
v_mov_b32 {v(t+5)}, 0x400000
s_mul_i32 {s(sT2)}, s2, {NPB*256}
v_cndmask_b32 {v(t+4)}, {v(t+5)}, {v(t+4)}, vcc
s_mul_i32 {s(sT3)}, {s(sST)}, {NS*256}
s_add_u32 {s(sT2)}, {s(sT2)}, {s(sT3)}
s_lshl_b32 {s(sT3)}, {s(sCB)}, 6
s_add_u32 {s(sT2)}, {s(sT2)}, {s(sT3)}
""")
for i in range(8):
    a(f"v_pk_mul_f32 {v(AG+2*i,2)}, {v(AG+2*i,2)}, {s(sC2,2)}")
for i in range(8):
    a(f"v_cvt_pk_bf16_f32 {v(SB+i)}, {v(AG+2*i)}, {v(AG+2*i+1)}")
a(f"""
s_waitcnt vmcnt(0)
ds_write_b128 {v(t+1)}, {v(SB,4)}
ds_write_b128 {v(t+1)}, {v(SB+4,4)} offset:1024
s_waitcnt lgkmcnt(0)
s_barrier
""")
for ks in range(8):
    a(f"ds_read_b128 {v(AF+4*ks,4)}, {v(t)} offset:{(ks>>1)*RING_W + (ks&1)*1024}")
for ks in range(8):
    a(f"s_waitcnt lgkmcnt({7-ks})")
    mfma(U, WBF + 4 * ks, AF + 4 * ks, U)
a(f"""
v_cmp_eq_u32 vcc, 0, v0
s_and_saveexec_b64 {s(sM,2)}, vcc
s_cbranch_execz L_noep
s_add_u32 {s(sEP)}, {s(sEP)}, 1
s_lshl_b32 {s(sT0)}, s2, 2
s_add_u32 {s(sT0)}, {s(sT0)}, {EP_OFF:#x}
v_mov_b32 {v(t+6)}, {s(sEP)}
v_mov_b32 {v(t+7)}, 0
buffer_store_dword {v(t+6)}, {v(t+7)}, {s(rWS,4)}, {s(sT0)} offen
L_noep:
s_mov_b64 exec, -1
s_nop 7
s_nop 3
""")
Y = AG
for i in range(8):
    a(f"v_pk_mul_f32 {v(Y+2*i,2)}, {v(U+2*i,2)}, {s(sC1,2)}")
for i in range(16):
    a(f"v_exp_f32 {v(Y+i)}, {v(Y+i)}")
for i in range(8):
    a(f"v_pk_add_f32 {v(Y+2*i,2)}, {v(Y+2*i,2)}, 1.0 op_sel_hi:[1,0]")
for i in range(16):
    a(f"v_rcp_f32 {v(Y+i)}, {v(Y+i)}")
for i in range(8):
    a(f"v_pk_mul_f32 {v(Y+2*i,2)}, {v(Y+2*i,2)}, {v(U+2*i,2)}")
for i in range(8):
    a(f"v_cvt_pk_bf16_f32 {v(SB+i)}, {v(Y+2*i)}, {v(Y+2*i+1)}")
a(f"""
buffer_store_dwordx4 {v(SB,4)}, {v(t+4)}, {s(rOUT,4)}, {s(sT2)} offen
buffer_store_dwordx4 {v(SB+4,4)}, {v(t+4)}, {s(rOUT,4)}, {s(sT2)} offen offset:16
""")
if STAMP:
    a("s_waitcnt vmcnt(0)")
    stamp(11)
    a(f"""
v_writelane_b32 {v(vSTAMP)}, {s(sSPIN)}, 12
v_writelane_b32 {v(vSTAMP)}, {s(sN)}, 13
s_mov_b32 {s(rWS+2)}, 0x600000
s_lshl_b32 {s(sT0)}, s2, 3
s_add_u32 {s(sT0)}, {s(sT0)}, {s(sW)}
s_lshl_b32 {s(sT0)}, {s(sT0)}, 6
s_add_u32 {s(sT0)}, {s(sT0)}, {ST_OFF:#x}
v_lshlrev_b32 {v(t+7)}, 2, {v(vL)}
s_mov_b64 exec, 0xffff
buffer_store_dword {v(vSTAMP)}, {v(t+7)}, {s(rWS,4)}, {s(sT0)} offen
""")
a("""
L_end:
s_endpgm
""")
a(f"""
L_slow:
s_mov_b32 {s(sMODE)}, 1
s_mov_b32 {s(sBASE)}, 0
s_mov_b32 {s(sHAVE)}, 0
s_mov_b64 {s(sPEND,2)}, 0
s_branch L_slow_round
L_slow_next:
s_cmp_eq_u32 {s(sMODE)}, 2
s_cbranch_scc1 L_epi
L_slow_round:
s_waitcnt vmcnt(0) lgkmcnt(0)
s_barrier
""")
init_lists()
a(f"""
L_slow_fill:
s_waitcnt lgkmcnt(0)
s_barrier
s_cmp_lg_u32 {s(sHAVE)}, 0
s_cbranch_scc1 L_slow_place
v_add_u32 {v(vSX+1)}, {s(sBASE)}, v0
v_lshlrev_b32 {v(t)}, 2, {v(vSX+1)}
buffer_load_dword {v(vSD)}, {v(t)}, {s(rDST,4)}, 0 offen
buffer_load_dword {v(vSX)}, {v(t)}, {s(rSRC,4)}, 0 offen
s_mul_i32 {s(sT0)}, s2, {NPB}
s_mov_b32 {s(sT1)}, {E}
s_add_u32 {s(sBASE)}, {s(sBASE)}, 512
s_waitcnt vmcnt(0)
v_subrev_u32 {v(vSD)}, {s(sT0)}, {v(vSD)}
v_cmp_gt_u32 vcc, {NPB}, {v(vSD)}
v_cmp_gt_u32 {s(sPEND,2)}, {s(sT1)}, {v(vSX+1)}
v_add_u32 {v(vSD)}, 1, {v(vSD)}
s_and_b64 {s(sPEND,2)}, {s(sPEND,2)}, vcc
L_slow_place:
s_mov_b64 exec, {s(sPEND,2)}
""")
place_issue(vSD, D0 + 1, D0 + 2)
a("s_waitcnt lgkmcnt(0)")
place_finish(vSD, D0 + 1, D0 + 2, vSX)
a(f"""
s_andn2_b64 {s(sPEND,2)}, {s(sPEND,2)}, exec
s_mov_b64 exec, -1
v_mov_b32 {v(t+6)}, {CNT}
s_waitcnt lgkmcnt(0)
s_barrier
ds_read_b64 {v(t,2)}, {v(t+6)}
s_waitcnt lgkmcnt(0)
v_readfirstlane_b32 {s(sT0)}, {v(t)}
v_readfirstlane_b32 {s(sT1)}, {v(t+1)}
s_max_u32 {s(sT2)}, {s(sT0)}, {s(sT1)}
s_cmp_eq_u32 {s(sST)}, 0
s_cselect_b32 {s(sN)}, {s(sT0)}, {s(sT1)}
s_min_u32 {s(sN)}, {s(sN)}, {CAP}
s_cmp_gt_u32 {s(sT2)}, {CAP}
s_cselect_b32 {s(sHAVE)}, 1, 0
s_cbranch_scc1 L_process
s_cmp_lt_u32 {s(sBASE)}, {E}
s_cbranch_scc1 L_slow_fill
s_mov_b32 {s(sMODE)}, 2
s_branch L_process
""")
a(f"""
.section .rodata,"a"
.p2align 6
.amdhsa_kernel {name}
  .amdhsa_next_free_vgpr {a.vmax}
  .amdhsa_next_free_sgpr {max(a.smax, 32)}
  .amdhsa_accum_offset {(a.vmax+3)//4*4}
  .amdhsa_group_segment_fixed_size 0
  .amdhsa_kernarg_size 72
  .amdhsa_user_sgpr_count 2
  .amdhsa_user_sgpr_kernarg_segment_ptr 1
  .amdhsa_system_sgpr_workgroup_id_x 1
  .amdhsa_float_denorm_mode_32 3
  .amdhsa_float_denorm_mode_16_64 3
.end_amdhsa_kernel
""")
open(out_path, "w").write(a.text())
print("vgprs", a.vmax, "sgprs", a.smax, "LDS", INIT_END, "lines", len(a.lines))
```
